```python
import torch

def _softmax(x, axis=-1):
    return torch.softmax(x, dim=axis)
def _gelu(x):
    return torch.nn.functional.gelu(x, approximate="tanh")
def _silu(x):
    return torch.nn.functional.silu(x)
def _sigmoid(x):
    return torch.sigmoid(x)
def _layernorm(x, axis=-1, eps=1e-5):
    m = x.mean(dim=axis, keepdim=True)
    v = x.var(dim=axis, keepdim=True, unbiased=False)
    return (x - m) / torch.sqrt(v + eps)
def _scatter_add(tgt, idx, src, axis=0):
    return tgt.clone().index_add_(axis, idx, src)
def _segment_sum(src, seg, n):
    out = torch.zeros((n,) + src.shape[1:], dtype=src.dtype)
    return out.index_add_(0, seg, src)
def _pad(x, pw):
    flat = tuple(v for pair in reversed(pw) for v in pair)
    return torch.nn.functional.pad(x, flat)

kernel_name = 'gated_mix__sliding_block_cached__glu_gated_swiglu__decode'

def setup_inputs():

    _w = (lambda a: (lambda t: t.to(torch.bfloat16) if t.is_floating_point() else t)(torch.as_tensor(a)))
    def _A_setup():
        B, Sq, D = 4, 1, 512
        Hq, Hkv, Sk, Dh = 32, 8, 8192, 128
        assert Hq % Hkv == 0, (Hq, Hkv)
        return {
            "x": _w((lambda *s: torch.randn(*s, dtype=torch.bfloat16) * 0.05)(B, Sq, D)),
            "k_cache": _w((lambda *s: torch.randn(*s, dtype=torch.bfloat16) * 6.4)(B, Hkv, Sk, Dh)),
            "v_cache": _w((lambda *s: torch.randn(*s, dtype=torch.bfloat16) * 0.05)(B, Hkv, Sk, Dh)),
            "wq": _w((lambda *s: torch.randn(*s, dtype=torch.bfloat16) * 6.4)(D, Hq * Dh) * (D ** -0.5)),
            "wo": _w((lambda *s: torch.randn(*s, dtype=torch.bfloat16) * 0.05)(Hq * Dh, D) * ((Hq * Dh) ** -0.5)),
        }
    _A_in = _A_setup()

    def _B_setup():
        B, S, D, F = 4, 1, 512, 1792
        return {
            "x": _w((lambda *s: torch.randn(*s, dtype=torch.bfloat16) * 0.05)(B, S, D)),
            "w1": _w((lambda *s: torch.randn(*s, dtype=torch.bfloat16) * 0.4)(D, F) * (2.0 / D) ** 0.5),
            "w3": _w((lambda *s: torch.randn(*s, dtype=torch.bfloat16) * 0.4)(D, F) * (2.0 / D) ** 0.5),
            "w2": _w((lambda *s: torch.randn(*s, dtype=torch.bfloat16) * 0.4)(F, D) * (2.0 / F) ** 0.5),
        }
    _B_in = _B_setup()

    return {
        "A_x": _A_in["x"],
        "A_k_cache": _A_in["k_cache"],
        "A_v_cache": _A_in["v_cache"],
        "A_wq": _A_in["wq"],
        "A_wo": _A_in["wo"],
        "B_x": _B_in["x"],
        "B_w1": _B_in["w1"],
        "B_w3": _B_in["w3"],
        "B_w2": _B_in["w2"],
        "gate_w": _w((lambda *s: torch.randn(*s, dtype=torch.bfloat16) * 0.05)(512) * 16.0),
    }

def reference(A_x, A_k_cache, A_v_cache, A_wq, A_wo, B_x, B_w1, B_w3, B_w2, gate_w):
    def _A_ref(x, k_cache, v_cache, wq, wo):
        B, Sq, D = x.shape
        Hq, Dh = 32, 128
        Hkv, Sk = k_cache.shape[1], k_cache.shape[2]
        W = min(4096, max(256, Sk // 4))
        rep = Hq // Hkv
        q = (lambda x, *d: x.permute(*d))((x @ wq).reshape(B, Sq, Hq, Dh), 0, 2, 1, 3)
        k = (lambda x, n, axis: torch.repeat_interleave(x, n, dim=axis))(k_cache[:, :, Sk - W:, :], rep, axis=1)
        v = (lambda x, n, axis: torch.repeat_interleave(x, n, dim=axis))(v_cache[:, :, Sk - W:, :], rep, axis=1)
        scores = torch.einsum("bhqd,bhkd->bhqk", q, k) * (Dh ** -0.5)
        p = _softmax(scores, axis=-1)
        o = torch.einsum("bhqk,bhkd->bhqd", p, v)
        return (lambda x, *d: x.permute(*d))(o, 0, 2, 1, 3).reshape(B, Sq, Hq * Dh) @ wo

    def _B_ref(x, w1, w3, w2):
        gate = torch.einsum("bsd,df->bsf", x, w1)
        up = torch.einsum("bsd,df->bsf", x, w3)
        h = _silu(gate) * up
        out = torch.einsum("bsf,fd->bsd", h, w2)
        return out

    x = A_x
    g = _sigmoid((x * gate_w).sum(-1, keepdims=True))
    a = _A_ref(x, A_k_cache, A_v_cache, A_wq, A_wo)
    b = _B_ref(x, B_w1, B_w3, B_w2)
    return g * a + (1 - g) * b
```

```python
KNAME = "gated_mix__sliding_block_cached__glu_gated_swiglu__decode_kernel"
class Asm:
    def __init__(self):
        self.lines = []
        self.nlabel = 0
    def __call__(self, s=""):
        for ln in s.strip("\n").split("\n"):
            self.lines.append("  " + ln.strip() if ln.strip() and not ln.strip().endswith(":") else ln.strip())
    def label(self, name):
        self.lines.append(name + ":")
    def newlabel(self, p="L"):
        self.nlabel += 1
        return "%s_%d" % (p, self.nlabel)
    def text(self):
        return "\n".join(self.lines) + "\n"

def wrap(body, grid, block, lds, vgpr=128, sgpr=96, header=""):
    return f"""{header}; @launch grid=({grid},1,1) block=({block},1,1) lds={lds}
.amdgcn_target "amdgcn-amd-amdhsa--gfx950"
.text
.globl {KNAME}
.p2align 8
.type {KNAME},@function
{KNAME}:
{body}
.section .rodata,"a"
.p2align 6
.amdhsa_kernel {KNAME}
  .amdhsa_next_free_vgpr {vgpr}
  .amdhsa_next_free_sgpr {sgpr}
  .amdhsa_accum_offset {(vgpr+3)//4*4}
  .amdhsa_group_segment_fixed_size 0
  .amdhsa_kernarg_size 104
  .amdhsa_user_sgpr_count 2
  .amdhsa_user_sgpr_kernarg_segment_ptr 1
  .amdhsa_system_sgpr_workgroup_id_x 1
.end_amdhsa_kernel
"""
```

```python
import sys
from gen_common import *

WS_P1  = 0x1000
WS_P2L = 0x22000
WS_P2  = 0x40000
WS_P3  = 0x140000
WS_END = 0x240000
WS_STAMP = 0x300000
LK, LV, LC = 0, 65536, 131072
Q01, GG, MX, LX, PP = LC+0, LC+1024, LC+1280, LC+1536, LC+2048
W3 = LC+4096
Q23, XO, XH = LC+28672, LC+29696, LC+30208
HASH = 0x9E3779B1
SCALE_LOG2E = 0.08838834764831845 * 1.4426950408889634
LOG2E = 1.4426950408889634

def f32hex(x):
    import struct
    return "0x%08x" % struct.unpack("<I", struct.pack("<f", x))[0]

def gen(stamps=False, nt=True, depth=6, rot=5, poll_limit=20000, sleep=1):
    a = Asm()
    NT = " nt" if nt else ""
    st_n = [0]
    def stamp():
        if stamps:
            i = st_n[0]; st_n[0] += 1
            assert i < 16
            a(f"s_memrealtime s[{64+2*i}:{65+2*i}]")
    def stamp_at(i):
        if stamps:
            a(f"s_memrealtime s[{64+2*i}:{65+2*i}]")
    def exec_n4():
        a("s_mov_b32 exec_lo, 0x000F000F\ns_mov_b32 exec_hi, 0x000F000F")
    def exec_all():
        a("s_mov_b64 exec, -1")
    def poll(loads, tags, name):
        L = a.newlabel("Lpoll_"+name); D = a.newlabel("Ldone_"+name)
        a(f"s_mov_b32 s62, {poll_limit}")
        a("s_mov_b64 s[60:61], exec")
        a.label(L)
        for ln in loads: a(ln)
        a("s_waitcnt vmcnt(0)")
        for t in tags: a(f"v_cmpx_eq_u32 vcc, s8, v{t}")
        a("s_cmp_eq_u64 exec, s[60:61]")
        a("s_mov_b64 exec, s[60:61]")
        a(f"s_cbranch_scc1 {D}")
        a("s_sub_u32 s62, s62, 1")
        a(f"s_cbranch_scc1 {D}")
        if sleep: a(f"s_sleep {sleep}")
        a(f"s_branch {L}")
        a.label(D)

    a(f"""
s_cmp_ge_u32 s2, 256
s_cbranch_scc1 L_end
""")
    stamp_at(0)
    a(f"""
s_load_dwordx16 s[16:31], s[0:1], 0
s_load_dwordx8 s[32:39], s[0:1], 64
s_load_dwordx2 s[40:41], s[0:1], 96
v_lshrrev_b32 v1, 6, v0
v_and_b32 v0, 63, v0
v_readfirstlane_b32 s3, v1
v_and_b32 v1, 15, v0
v_lshrrev_b32 v2, 4, v0
v_and_b32 v3, 3, v0
s_and_b32 s4, s2, 7
s_lshr_b32 s5, s2, 3
s_lshr_b32 s6, s5, 3
s_and_b32 s7, s5, 7
v_mov_b32 v4, 0
s_waitcnt lgkmcnt(0)
s_mov_b32 s44, s40
s_mov_b32 s45, s41
s_mov_b32 s46, {WS_END}
s_mov_b32 s47, 0x00020000
buffer_load_dword v5, v4, s[44:47], 0 offen sc1
s_cmp_ge_u32 s3, 4
s_cbranch_scc1 L_GB
s_cmp_eq_u32 s3, 3
s_cbranch_scc1 L_GA3
s_mov_b32 s52, s16
s_mov_b32 s53, s17
s_mov_b32 s54, 4096
s_mov_b32 s55, 0x00020000
v_lshlrev_b32 v7, 10, v3
v_lshl_add_u32 v7, v2, 4, v7
s_cmp_eq_u32 s3, 2
s_cbranch_scc1 L_GA2
s_lshl_b32 s9, s4, 5
s_add_u32 s9, s9, s5
s_movk_i32 s12, 8192
s_movk_i32 s13, 3584
s_mov_b32 s14, 4194304
s_mov_b32 s15, 1835008
s_cmp_ge_u32 s9, 128
s_cselect_b32 s48, s28, s22
s_cselect_b32 s49, s29, s23
s_cselect_b32 s12, s13, s12
s_cselect_b32 s14, s15, s14
s_cselect_b32 s10, 128, 0
s_cmp_ge_u32 s9, 184
s_cselect_b32 s48, s30, s48
s_cselect_b32 s49, s31, s49
s_cselect_b32 s10, 184, s10
s_sub_u32 s10, s9, s10
s_lshl_b32 s10, s10, 6
s_add_u32 s48, s48, s10
s_addc_u32 s49, s49, 0
s_sub_u32 s50, s14, s10
s_cmp_ge_u32 s9, 240
s_cselect_b32 s50, 0, s50
s_mov_b32 s51, 0x00020000
v_lshrrev_b32 v6, 1, v0
v_mul_lo_u32 v6, v6, s12
v_and_b32 v8, 1, v0
v_lshl_add_u32 v6, v8, 4, v6
s_lshl_b32 s10, s3, 5
s_lshl_b32 s11, s12, 5
s_lshl_b32 s13, s3, 14
s_add_u32 s13, s13, {LC}
s_mov_b32 m0, s13
s_add_u32 s13, s13, 16384
L_W1:
buffer_load_dwordx4 v6, s[48:51], s10 offen{NT} lds
s_add_u32 s10, s10, s11
s_add_u32 m0, m0, 1024
s_cmp_lt_u32 m0, s13
s_cbranch_scc1 L_W1
s_branch L_GAX
L_GA2:
s_mov_b32 s48, s34
s_mov_b32 s49, s35
s_mov_b32 s50, 1024
s_mov_b32 s51, 0x00020000
v_lshlrev_b32 v6, 4, v2
s_mov_b32 exec_lo, 0x00010001
s_mov_b32 exec_hi, 0x00010001
""")
    for s in range(16):
        a(f"buffer_load_dwordx4 v[{128+4*s}:{131+4*s}], v6, s[48:51], 0 offen offset:{64*s}")
    a.label("L_GAX")
    exec_n4()
    for s in range(16):
        a(f"buffer_load_dwordx4 v[{64+4*s}:{67+4*s}], v7, s[52:55], 0 offen offset:{64*s}")
    exec_all()
    a("s_barrier")
    stamp_at(1)
    a(f"""
v_lshrrev_b32 v8, 2, v1
v_lshl_add_u32 v8, v2, 3, v8
v_lshlrev_b32 v8, 5, v8
v_lshl_add_u32 v8, v3, 3, v8
s_lshl_b32 s13, s3, 14
s_add_u32 s13, s13, {LC}
v_add_u32 v8, s13, v8
s_waitcnt vmcnt(0)
""")
    stamp_at(2)
    a(f"""
v_readfirstlane_b32 s8, v5
s_cmp_eq_u32 s3, 2
s_cbranch_scc1 L_GAM
""")
    for s in range(16):
        for hf in range(2):
            a(f"ds_read_b64_tr_b16 v[{128+4*s+2*hf}:{129+4*s+2*hf}], v8 offset:{s*1024+hf*128}")
    a.label("L_GAM")
    a(f"""
s_add_u32 s8, s8, 1
s_mul_i32 s8, s8, {HASH:#x}
s_waitcnt lgkmcnt(0)
""")
    for s in range(16):
        c = "0" if s == 0 else "v[16:19]"
        a(f"v_mfma_f32_16x16x32_bf16 v[16:19], v[{128+4*s}:{131+4*s}], v[{64+4*s}:{67+4*s}], {c}")
    a(f"""
s_cmp_eq_u32 s3, 2
s_cbranch_scc1 L_GA2S
v_lshlrev_b32 v9, 7, v1
v_lshl_add_u32 v9, v2, 4, v9
s_lshl_b32 s10, s9, 9
s_lshl_b32 s11, s3, 6
s_add_u32 s10, s10, s11
s_add_u32 s10, s10, {WS_P1}
v_mov_b32 v21, s8
v_mov_b32 v23, s8
s_nop 1
v_cvt_pk_bf16_f32 v20, v16, v17
v_cvt_pk_bf16_f32 v22, v18, v19
""")
    exec_n4()
    a("buffer_store_dwordx4 v[20:23], v9, s[44:47], s10 offen sc1")
    exec_all()
    stamp_at(3)
    a(f"""
v_lshrrev_b32 v9, 3, v0
v_lshlrev_b32 v9, 9, v9
v_and_b32 v10, 7, v0
v_lshl_add_u32 v9, v10, 4, v9
s_lshl_b32 s10, s4, 4
s_lshl_b32 s11, s3, 3
s_add_u32 s10, s10, s11
s_lshl_b32 s10, s10, 9
s_lshl_b32 s11, s6, 7
s_add_u32 s10, s10, s11
s_add_u32 s10, s10, {WS_P1}
""")
    poll(["buffer_load_dwordx4 v[24:27], v9, s[44:47], s10 offen sc1"], [25, 27], "q")
    a(f"""
s_mul_i32 s10, s3, {Q23-Q01}
s_add_u32 s10, s10, {Q01}
v_lshlrev_b32 v9, 3, v0
v_add_u32 v9, s10, v9
v_mov_b32 v25, v26
ds_write_b64 v9, v[24:25]
s_waitcnt lgkmcnt(0)
""")
    stamp_at(4)
    a("s_barrier")
    a("s_branch L_COMMON")
    a.label("L_GA2S")
    a(f"""
s_nop 7
v_mul_f32 v24, {f32hex(-LOG2E)}, v16
v_exp_f32 v24, v24
s_nop 0
v_add_f32 v24, 1.0, v24
v_rcp_f32 v24, v24
s_barrier
v_lshlrev_b32 v9, 2, v0
v_add_u32 v9, {GG}, v9
s_mov_b64 exec, 15
ds_write_b32 v9, v24
s_mov_b64 exec, -1
s_branch L_COMMON
L_GA3:
s_barrier
s_waitcnt vmcnt(0)
v_readfirstlane_b32 s8, v5
s_add_u32 s8, s8, 1
s_mul_i32 s8, s8, {HASH:#x}
s_barrier
s_branch L_COMMON
""")
    a.label("L_GB")
    a(f"""
s_sub_u32 s9, s3, 4
s_lshl_b32 s10, s6, 3
s_add_u32 s10, s10, s4
s_lshl_b32 s10, s10, 21
s_lshl_b32 s11, s7, 16
s_add_u32 s10, s10, s11
s_add_u32 s10, s10, {6144*256}
s_add_u32 s48, s18, s10
s_addc_u32 s49, s19, 0
s_mov_b32 s50, 65536
s_mov_b32 s51, 0x00020000
s_add_u32 s52, s20, s10
s_addc_u32 s53, s21, 0
s_mov_b32 s54, 65536
s_mov_b32 s55, 0x00020000
s_mul_i32 s10, s2, {rot}
s_add_u32 s10, s10, s9
s_and_b32 s10, s10, 63
s_and_b32 s11, s10, 3
s_lshl_b32 s11, s11, 2
v_add_u32 v6, s11, v2
v_xor_b32 v6, v6, v1
v_lshlrev_b32 v6, 4, v6
v_lshl_add_u32 v6, v2, 8, v6
s_and_b32 s11, s10, 1
s_lshl_b32 s11, s11, 2
v_add_u32 v7, s11, v2
v_lshlrev_b32 v7, 1, v7
v_xor_b32 v7, v7, v1
v_lshlrev_b32 v7, 4, v7
v_lshl_add_u32 v7, v2, 8, v7
s_mov_b32 s12, 16
s_barrier
""")
    stamp_at(1)
    a(f"""
L_KL:
s_lshl_b32 s11, s10, 10
s_mov_b32 m0, s11
s_add_u32 s10, s10, 4
s_and_b32 s10, s10, 63
s_waitcnt vmcnt({depth-1})
buffer_load_dwordx4 v6, s[48:51], s11 offen{NT} lds
s_sub_u32 s12, s12, 1
s_cmp_lg_u32 s12, 0
s_cbranch_scc1 L_KL
s_mov_b32 s12, 16
""")
    stamp_at(2)
    a(f"""
L_VL:
s_lshl_b32 s11, s10, 10
s_add_u32 m0, s11, {LV}
s_add_u32 s10, s10, 4
s_and_b32 s10, s10, 63
s_waitcnt vmcnt({depth-1})
buffer_load_dwordx4 v7, s[52:55], s11 offen{NT} lds
s_sub_u32 s12, s12, 1
s_cmp_lg_u32 s12, 0
s_cbranch_scc1 L_VL
""")
    stamp_at(3)
    a(f"""
s_lshl_b32 s10, s4, 2
s_add_u32 s10, s10, s6
s_lshl_b32 s10, s10, 1
s_bfe_u32 s11, s5, 0x10002
s_add_u32 s10, s10, s11
s_and_b32 s11, s5, 3
s_lshl_b32 s11, s11, 8
s_lshl_b32 s12, s10, 16
s_add_u32 s12, s12, s11
s_add_u32 s48, s24, s12
s_addc_u32 s49, s25, 0
s_sub_u32 s50, 4194304, s12
s_mul_i32 s12, s10, {28*1024}
s_add_u32 s12, s12, s11
s_add_u32 s52, s32, s12
s_addc_u32 s53, s33, 0
s_sub_u32 s54, 1835008, s12
v_lshlrev_b32 v6, 1, v2
v_xor_b32 v6, v6, v1
v_lshlrev_b32 v6, 4, v6
v_lshl_add_u32 v6, v2, 10, v6
v_xor_b32 v7, 0x80, v6
v_readfirstlane_b32 s8, v5
s_add_u32 s8, s8, 1
s_mul_i32 s8, s8, {HASH:#x}
s_waitcnt vmcnt(16)
""")
    stamp_at(4)
    a("s_barrier")
    a(f"""
s_lshl_b32 s10, s9, 14
s_lshl_b32 s11, s9, 12
s_add_u32 s11, s11, {W3}
""")
    for ii in range(4):
        a(f"s_add_u32 m0, s11, {ii*1024}")
        a(f"s_add_u32 s12, s10, {ii*4096}")
        a(f"buffer_load_dwordx4 v{6+(ii&1)}, s[48:51], s12 offen{NT} lds")
    a(f"""
s_lshl_b32 s10, s9, 13
s_lshl_b32 s11, s9, 11
s_add_u32 s11, s11, {W3+16384}
""")
    for ii in range(2):
        a(f"s_add_u32 m0, s11, {ii*1024}")
        a(f"s_add_u32 s12, s10, {ii*4096}")
        a(f"s_min_u32 s12, s12, {6*4096}")
        a(f"buffer_load_dwordx4 v{6+(ii&1)}, s[52:55], s12 offen{NT} lds")

    a.label("L_COMMON")
    stamp_at(5)
    a(f"""
v_xor_b32 v8, v2, v1
s_lshl_b32 s10, s3, 13
v_lshl_add_u32 v9, v1, 8, s10
v_lshl_add_u32 v10, v8, 4, v9
v_xor_b32 v11, 64, v10
v_xor_b32 v12, 128, v10
v_xor_b32 v13, 192, v10
v_lshrrev_b32 v14, 1, v3
v_mul_u32_u24 v14, {Q23-Q01}, v14
v_and_b32 v15, 1, v3
v_lshl_add_u32 v14, v15, 8, v14
v_lshl_add_u32 v14, v2, 4, v14
v_add_u32 v14, {Q01}, v14
""")
    for j in range(4):
        a(f"ds_read_b128 v[{64+4*j}:{67+4*j}], v14 offset:{64*j}")
    for tt in range(2):
        for j in range(4):
            a(f"ds_read_b128 v[{80+(tt*4+j)*4}:{83+(tt*4+j)*4}], v{10+j} offset:{tt*4096}")
    a("s_waitcnt lgkmcnt(0)")
    for tt in range(2):
        for j in range(4):
            c = "0" if j == 0 else f"v[{16+4*tt}:{19+4*tt}]"
            a(f"v_mfma_f32_16x16x32_bf16 v[{16+4*tt}:{19+4*tt}], v[{80+(tt*4+j)*4}:{83+(tt*4+j)*4}], v[{64+4*j}:{67+4*j}], {c}")
    a(f"""
v_lshlrev_b32 v28, 5, v3
s_lshl_b32 s10, s3, 2
s_add_u32 s11, s10, {MX}
v_add_u32 v29, s11, v28
s_nop 7
v_max3_f32 v24, v16, v17, v18
v_max3_f32 v25, v19, v20, v21
v_max3_f32 v24, v24, v22, v23
v_max_f32 v24, v24, v25
v_mov_b32 v25, v24
s_nop 1
v_permlane32_swap_b32 v24, v25
s_nop 1
v_max_f32 v24, v24, v25
v_mov_b32 v25, v24
s_nop 1
v_permlane16_swap_b32 v24, v25
s_nop 1
v_max_f32 v24, v24, v25
s_mov_b64 exec, 15
ds_write_b32 v29, v24
s_mov_b64 exec, -1
s_waitcnt lgkmcnt(0)
s_barrier
v_add_u32 v30, {MX}, v28
ds_read_b128 v[32:35], v30
ds_read_b128 v[36:39], v30 offset:16
s_mov_b32 s12, {f32hex(SCALE_LOG2E)}
s_waitcnt lgkmcnt(0)
v_max3_f32 v24, v32, v33, v34
v_max3_f32 v25, v35, v36, v37
v_max3_f32 v24, v24, v38, v39
v_max_f32 v24, v24, v25
v_mul_f32 v24, s12, v24
""")
    for i in range(8):
        a(f"v_fma_f32 v{16+i}, v{16+i}, s12, -v24")
    for i in range(8):
        a(f"v_exp_f32 v{16+i}, v{16+i}")
    a(f"""
s_nop 0
v_add_f32 v25, v16, v17
v_add_f32 v26, v18, v19
v_add_f32 v27, v20, v21
v_add_f32 v31, v22, v23
v_add_f32 v25, v25, v26
v_add_f32 v27, v27, v31
v_add_f32 v25, v25, v27
v_cvt_pk_bf16_f32 v32, v16, v17
v_cvt_pk_bf16_f32 v33, v18, v19
v_cvt_pk_bf16_f32 v34, v20, v21
v_cvt_pk_bf16_f32 v35, v22, v23
v_mov_b32 v26, v25
s_nop 1
v_permlane32_swap_b32 v25, v26
s_nop 1
v_add_f32 v25, v25, v26
v_mov_b32 v26, v25
s_nop 1
v_permlane16_swap_b32 v25, v26
s_nop 1
v_add_f32 v25, v25, v26
s_lshl_b32 s11, s3, 8
s_add_u32 s11, s11, {PP}
v_lshlrev_b32 v36, 6, v2
v_lshl_add_u32 v36, v3, 4, v36
v_add_u32 v37, s11, v36
v_add_u32 v29, {LX-MX}, v29
""")
    exec_n4()
    a("ds_write_b128 v37, v[32:35]")
    a("s_mov_b64 exec, 15")
    a("ds_write_b32 v29, v25")
    exec_all()
    a(f"""
s_waitcnt lgkmcnt(0)
s_barrier
""")
    stamp_at(6)
    a(f"""
v_add_u32 v36, {PP}, v36
""")
    for s in range(8):
        a(f"ds_read_b128 v[{64+4*s}:{67+4*s}], v36 offset:{256*s}")
    a(f"""
v_add_u32 v30, {LX-MX}, v30
ds_read_b128 v[32:35], v30
ds_read_b128 v[40:43], v30 offset:16
v_lshrrev_b32 v8, 2, v1
v_lshl_add_u32 v9, v2, 2, v8
v_and_b32 v10, 7, v9
v_lshlrev_b32 v10, 1, v10
v_lshrrev_b32 v11, 1, v3
s_lshl_b32 s10, s3, 1
v_add_u32 v11, s10, v11
v_xor_b32 v10, v10, v11
v_lshlrev_b32 v10, 4, v10
v_lshl_add_u32 v10, v9, 8, v10
v_and_b32 v11, 1, v3
v_lshl_add_u32 v10, v11, 3, v10
v_add_u32 v12, {LV}, v10
v_add_u32 v13, {W3}, v10
s_waitcnt lgkmcnt(0)
v_add_f32 v32, v32, v33
v_add_f32 v34, v34, v35
v_add_f32 v40, v40, v41
v_add_f32 v42, v42, v43
v_add_f32 v32, v32, v34
v_add_f32 v40, v40, v42
v_add_f32 v32, v32, v40
v_rcp_f32 v33, v32
v_log_f32 v34, v32
s_nop 0
v_add_f32 v34, v34, v24
s_cmp_lt_u32 s3, 4
s_cbranch_scc1 L_NOVW
s_waitcnt vmcnt(6)
L_NOVW:
s_barrier
""")
    stamp_at(7)
    for s in range(8):
        for hf in range(2):
            a(f"ds_read_b64_tr_b16 v[{96+4*s+2*hf}:{97+4*s+2*hf}], v12 offset:{s*8192+hf*4096}")
    a(f"""
s_lshl_b32 s10, s4, 4
s_add_u32 s10, s10, s6
s_lshl_b32 s10, s10, 3
s_add_u32 s10, s10, s7
v_lshlrev_b32 v14, 15, v1
v_lshl_add_u32 v14, v2, 5, v14
s_lshl_b32 s11, s10, 10
s_lshl_b32 s12, s3, 7
s_add_u32 s11, s11, s12
s_add_u32 s11, s11, {WS_P2}
s_waitcnt lgkmcnt(0)
""")
    for s in range(8):
        c = "0" if s == 0 else "v[16:19]"
        a(f"v_mfma_f32_16x16x32_bf16 v[16:19], v[{96+4*s}:{99+4*s}], v[{64+4*s}:{67+4*s}], {c}")
    a(f"""
v_mov_b32 v21, s8
v_mov_b32 v23, s8
v_mov_b32 v25, s8
v_mov_b32 v27, s8
v_mov_b32 v35, s8
v_lshlrev_b32 v15, 8, v1
s_lshl_b32 s12, s10, 3
s_add_u32 s12, s12, {WS_P2L}
s_nop 3
v_mul_f32 v20, v16, v33
v_mul_f32 v22, v17, v33
v_mul_f32 v24, v18, v33
v_mul_f32 v26, v19, v33
""")
    exec_n4()
    a("buffer_store_dwordx4 v[20:23], v14, s[44:47], s11 offen sc1")
    a("buffer_store_dwordx4 v[24:27], v14, s[44:47], s11 offen offset:16 sc1")
    a(f"""
s_cmp_lg_u32 s3, 0
s_cbranch_scc1 L_NOLSE
s_mov_b64 exec, 15
buffer_store_dwordx2 v[34:35], v15, s[44:47], s12 offen sc1
L_NOLSE:
s_mov_b64 exec, -1
""")
    stamp_at(8)
    a(f"""
s_lshl_b32 s13, s4, 2
s_add_u32 s13, s13, s6
s_lshl_b32 s14, s13, 1
s_bfe_u32 s15, s5, 0x10002
s_add_u32 s14, s14, s15
s_and_b32 s9, s5, 3
s_cmp_ge_u32 s3, 4
s_cbranch_scc1 L_GB2
s_lshl_b32 s10, s13, 2
s_add_u32 s10, s10, s3
s_lshl_b32 s11, s10, 13
s_lshl_b32 s12, s15, 9
s_add_u32 s11, s11, s12
s_add_u32 s11, s11, {WS_P2}
s_lshl_b32 s12, s10, 6
s_add_u32 s12, s12, {WS_P2L}
v_and_b32 v8, 31, v0
v_lshrrev_b32 v9, 5, v0
v_lshlrev_b32 v10, 4, v8
v_lshl_add_u32 v10, v9, 12, v10
v_lshlrev_b32 v11, 5, v9
v_xor_b32 v14, 32, v11
""")
    loads = [f"buffer_load_dwordx4 v[{64+4*i}:{67+4*i}], v10, s[44:47], s11 offen offset:{1024*i} sc1" for i in range(4)]
    loads += ["buffer_load_dwordx4 v[80:83], v11, s[44:47], s12 offen sc1",
              "buffer_load_dwordx4 v[84:87], v11, s[44:47], s12 offen offset:16 sc1",
              "buffer_load_dwordx4 v[88:91], v14, s[44:47], s12 offen sc1",
              "buffer_load_dwordx4 v[92:95], v14, s[44:47], s12 offen offset:16 sc1"]
    tags = [65+2*i for i in range(16)]
    poll(loads, tags, "o")
    stamp_at(9)
    a(f"""
v_max3_f32 v16, v80, v82, v84
v_max3_f32 v17, v86, v88, v90
v_max3_f32 v16, v16, v92, v94
v_max_f32 v16, v16, v17
v_sub_f32 v80, v80, v16
v_sub_f32 v82, v82, v16
v_sub_f32 v84, v84, v16
v_sub_f32 v86, v86, v16
v_sub_f32 v88, v88, v16
v_sub_f32 v90, v90, v16
v_sub_f32 v92, v92, v16
v_sub_f32 v94, v94, v16
v_exp_f32 v80, v80
v_exp_f32 v82, v82
v_exp_f32 v84, v84
v_exp_f32 v86, v86
v_exp_f32 v88, v88
v_exp_f32 v90, v90
v_exp_f32 v92, v92
v_exp_f32 v94, v94
v_mul_f32 v18, v80, v64
v_mul_f32 v19, v80, v66
v_fmac_f32 v18, v82, v68
v_fmac_f32 v19, v82, v70
v_fmac_f32 v18, v84, v72
v_fmac_f32 v19, v84, v74
v_fmac_f32 v18, v86, v76
v_fmac_f32 v19, v86, v78
v_add_f32 v16, v80, v82
v_add_f32 v17, v84, v86
v_add_f32 v20, v88, v90
v_add_f32 v21, v92, v94
v_add_f32 v16, v16, v17
v_add_f32 v20, v20, v21
v_add_f32 v16, v16, v20
v_rcp_f32 v16, v16
v_mov_b32 v20, v18
v_mov_b32 v21, v19
v_lshrrev_b32 v22, 4, v8
v_lshlrev_b32 v22, 8, v22
v_permlane32_swap_b32 v18, v20
v_permlane32_swap_b32 v19, v21
v_bfe_u32 v23, v8, 1, 2
v_lshl_add_u32 v22, v23, 4, v22
v_add_f32 v18, v18, v20
v_add_f32 v19, v19, v21
v_bfe_u32 v23, v8, 3, 1
v_lshl_add_u32 v22, v23, 3, v22
v_mul_f32 v18, v18, v16
v_mul_f32 v19, v19, v16
v_and_b32 v23, 1, v8
v_lshl_add_u32 v22, v23, 2, v22
s_lshl_b32 s10, s3, 6
s_add_u32 s10, s10, {XO}
v_cvt_pk_bf16_f32 v18, v18, v19
v_add_u32 v22, s10, v22
ds_write_b32 v22, v18
s_branch L_B7
L_GB2:
s_cmp_lg_u32 s3, 4
s_cbranch_scc1 L_B7
v_min_u32 v8, 13, v1
s_mul_i32 s10, s14, 28
v_lshl_add_u32 v9, v8, 1, s10
v_lshrrev_b32 v10, 5, v9
v_lshlrev_b32 v10, 9, v10
v_and_b32 v11, 31, v9
v_lshl_add_u32 v10, v11, 2, v10
v_lshl_add_u32 v10, v2, 7, v10
s_mov_b32 s11, {WS_P1+128*512}
s_mov_b32 s12, {WS_P1+184*512}
""")
    poll(["buffer_load_dwordx2 v[64:65], v10, s[44:47], s11 offen sc1",
          "buffer_load_dwordx2 v[66:67], v10, s[44:47], s12 offen sc1"], [65, 67], "h")
    a(f"""
v_lshlrev_b32 v16, 16, v64
v_and_b32 v17, 0xffff0000, v64
v_lshlrev_b32 v18, 16, v66
v_and_b32 v19, 0xffff0000, v66
v_mul_f32 v20, {f32hex(-LOG2E)}, v16
v_mul_f32 v21, {f32hex(-LOG2E)}, v17
v_exp_f32 v20, v20
v_exp_f32 v21, v21
s_nop 0
v_add_f32 v20, 1.0, v20
v_add_f32 v21, 1.0, v21
v_rcp_f32 v20, v20
v_rcp_f32 v21, v21
v_mul_f32 v16, v16, v18
v_mul_f32 v17, v17, v19
v_mul_f32 v16, v16, v20
v_mul_f32 v17, v17, v21
v_cvt_pk_bf16_f32 v16, v16, v17
v_cmp_gt_u32 vcc, 14, v1
v_bfe_u32 v23, v1, 1, 2
v_lshlrev_b32 v22, 4, v23
v_lshrrev_b32 v23, 3, v1
v_lshl_add_u32 v22, v23, 3, v22
v_and_b32 v23, 1, v1
v_lshl_add_u32 v22, v23, 2, v22
v_lshl_add_u32 v22, v2, 6, v22
v_add_u32 v22, {XH}, v22
v_cndmask_b32 v16, 0, v16, vcc
ds_write_b32 v22, v16
L_B7:
s_waitcnt vmcnt(0) lgkmcnt(0)
s_barrier
""")
    stamp_at(10)
    a(f"""
v_lshlrev_b32 v8, 6, v3
v_lshl_add_u32 v8, v2, 4, v8
v_add_u32 v9, {XO}, v8
v_lshlrev_b32 v10, 2, v3
v_add_u32 v10, {GG}, v10
ds_read_b128 v[64:67], v9
ds_read_b128 v[68:71], v9 offset:256
ds_read_b128 v[72:75], v9 offset:{XH-XO}
ds_read_b32 v11, v10
""")
    for s in range(3):
        for hf in range(2):
            a(f"ds_read_b64_tr_b16 v[{96+4*s+2*hf}:{97+4*s+2*hf}], v13 offset:{s*8192+hf*4096}")
    a(f"""
; P3 addr
v_lshlrev_b32 v14, 18, v1
v_lshrrev_b32 v15, 1, v2
v_lshl_add_u32 v14, v15, 12, v14
v_and_b32 v15, 1, v2
v_lshl_add_u32 v14, v15, 5, v14
s_lshl_b32 s10, s9, 4
s_lshl_b32 s11, s3, 1
s_add_u32 s10, s10, s11
s_lshl_b32 s10, s10, 12
s_lshl_b32 s11, s14, 6
s_add_u32 s10, s10, s11
s_add_u32 s10, s10, {WS_P3}
v_mov_b32 v25, s8
v_mov_b32 v27, s8
v_mov_b32 v29, s8
v_mov_b32 v31, s8
s_waitcnt lgkmcnt(0)
v_mfma_f32_16x16x32_bf16 v[20:23], v[104:107], v[72:75], 0
v_mfma_f32_16x16x32_bf16 v[16:19], v[96:99], v[64:67], 0
v_mfma_f32_16x16x32_bf16 v[16:19], v[100:103], v[68:71], v[16:19]
v_sub_f32 v12, 1.0, v11
s_nop 7
v_mul_f32 v20, v20, v12
v_mul_f32 v21, v21, v12
v_mul_f32 v22, v22, v12
v_mul_f32 v23, v23, v12
v_fma_f32 v24, v16, v11, v20
v_fma_f32 v26, v17, v11, v21
v_fma_f32 v28, v18, v11, v22
v_fma_f32 v30, v19, v11, v23
""")
    exec_n4()
    a("buffer_store_dwordx4 v[24:27], v14, s[44:47], s10 offen sc1")
    a("buffer_store_dwordx4 v[28:31], v14, s[44:47], s10 offen offset:16 sc1")
    exec_all()
    stamp_at(11)
    a(f"""
s_cmp_lg_u32 s3, 0
s_cbranch_scc1 L_FIN
s_lshl_b32 s10, s2, 12
s_add_u32 s10, s10, {WS_P3}
v_lshlrev_b32 v8, 4, v0
""")
    loads = [f"buffer_load_dwordx4 v[{64+4*i}:{67+4*i}], v8, s[44:47], s10 offen offset:{1024*i} sc1" for i in range(4)]
    poll(loads, [65+2*i for i in range(8)], "y")
    stamp_at(12)
    a(f"""
v_add_f32 v16, v64, v68
v_add_f32 v17, v66, v70
v_add_f32 v18, v72, v76
v_add_f32 v19, v74, v78
v_add_f32 v16, v16, v18
v_add_f32 v17, v17, v19
s_nop 1
v_add_f32_dpp v16, v16, v16 row_ror:4 row_mask:0xf bank_mask:0xf
v_add_f32_dpp v17, v17, v17 row_ror:4 row_mask:0xf bank_mask:0xf
s_nop 1
v_add_f32_dpp v16, v16, v16 row_ror:8 row_mask:0xf bank_mask:0xf
v_add_f32_dpp v17, v17, v17 row_ror:8 row_mask:0xf bank_mask:0xf
v_mov_b32 v18, v16
v_mov_b32 v19, v17
s_nop 1
v_permlane16_swap_b32 v16, v18
v_permlane16_swap_b32 v17, v19
s_nop 1
v_add_f32 v16, v16, v18
v_add_f32 v17, v17, v19
v_mov_b32 v18, v16
v_mov_b32 v19, v17
s_nop 1
v_permlane32_swap_b32 v16, v18
v_permlane32_swap_b32 v17, v19
s_nop 1
v_add_f32 v16, v16, v18
v_add_f32 v17, v17, v19
s_mov_b32 s48, s36
s_mov_b32 s49, s37
s_mov_b32 s50, 4096
s_mov_b32 s51, 0x00020000
v_cvt_pk_bf16_f32 v16, v16, v17
v_lshlrev_b32 v8, 2, v0
s_lshl_b32 s10, s2, 4
s_mov_b64 exec, 15
buffer_store_dword v16, v8, s[48:51], s10 offen
s_cmp_lg_u32 s2, 0
s_cbranch_scc1 L_FIN
s_mov_b64 exec, 1
v_add_u32 v5, 1, v5
v_mov_b32 v4, 0
buffer_store_dword v5, v4, s[44:47], 0 offen sc1
L_FIN:
s_mov_b64 exec, -1
""")
    if stamps:
        stamp_at(13)
        a(f"""
s_waitcnt lgkmcnt(0) vmcnt(0)
s_mov_b32 s46, {WS_STAMP+256*8*64}
s_lshl_b32 s10, s2, 3
s_add_u32 s10, s10, s3
s_lshl_b32 s10, s10, 6
s_add_u32 s10, s10, {WS_STAMP}
v_mov_b32 v4, 0
s_mov_b64 exec, 1
""")
        for i in range(14):
            a(f"v_mov_b32 v6, s{64+2*i}")
            a(f"buffer_store_dword v6, v4, s[44:47], s10 offen offset:{4*i}")
        a("s_getreg_b32 s11, hwreg(HW_REG_XCC_ID)")
        a("v_mov_b32 v6, s11")
        a(f"buffer_store_dword v6, v4, s[44:47], s10 offen offset:{4*15}")
    a("L_end:")
    a("s_endpgm")
    return a.text()

HEADER = open("gated_mix__sliding_block_cached__glu_gated_swiglu__decode.s.ref").read().split("; Override launch geometry")[0]

def full(**kw):
    return wrap(gen(**kw), 256, 512, 163840, vgpr=192, sgpr=100, header=HEADER)

if __name__ == "__main__":
    open("k1.s", "w").write(full())
    open("k1_diag.s", "w").write(full(stamps=True))
```

```python
import sys
from gen_common import *

WS_P1  = 0x1000
WS_P2L = 0x82000
WS_P2  = 0x90000
WS_P3  = 0x110000
WS_END = 0x210000
WS_STAMP = 0x300000
AOFF = 0x400000
LK, LV, LVB, LC = 0, 65536, 98304, 131072
W3 = LC
S0 = LC + 24576
C_P1, C_QK, C_VA, C_VB, C_P, C_X, C_S, C_S2 = [S0 + 4*i for i in range(8)]
GG, ML, QQ, XO, XH, PP = S0+32, S0+128, S0+512, S0+6656, S0+7168, S0+2560
PART = S0 + 1536
HASH = 0x9E3779B1
SCALE_LOG2E = 0.08838834764831845 * 1.4426950408889634
LOG2E = 1.4426950408889634

def f32hex(x):
    import struct
    return "0x%08x" % struct.unpack("<I", struct.pack("<f", x))[0]

def gen(stamps=False, nt=True, depth=6, rot=5, poll_limit=20000, sleep=4, pre=1, spin_sleep=1, qsleep=2, osleep=0, ysleep=0, bper=4, asleep=1):
    a = Asm()
    NT = " nt" if nt else ""
    def stamp_at(i):
        if stamps:
            a(f"s_memrealtime s[{64+2*i}:{65+2*i}]")
    def exec_n4():
        a("s_mov_b32 exec_lo, 0x000F000F\ns_mov_b32 exec_hi, 0x000F000F")
    def exec_all():
        a("s_mov_b64 exec, -1")
    def poll(loads, tags, name, first_sleep=0, mask=None, preissued=False, dual=False, slp=None):
        L = a.newlabel("Lpoll_"+name); D = a.newlabel("Ldone_"+name); C = a.newlabel("Lchk_"+name)
        if slp is None: slp = sleep
        lim = poll_limit - (poll_limit % bper) + bper - 1
        a(f"s_mov_b32 s62, {lim}")
        if first_sleep:
            n = first_sleep
            while n > 0:
                a(f"s_sleep {min(n,127)}"); n -= 127
        if mask: a(mask)
        if preissued: a(f"s_branch {C}")
        a.label(L)
        if dual:
            a(f"s_and_b32 s63, s62, {bper-1}")
            a("s_cselect_b32 s56, s98, s40")
            a("s_cselect_b32 s57, s99, s41")
        for ln in loads: a(ln)
        a.label(C)
        a("s_waitcnt vmcnt(0)")
        for i, t in enumerate(tags):
            if i == 0: a(f"v_cmp_ne_u32 vcc, s8, v{t}")
            else:
                a(f"v_cmp_ne_u32 s[60:61], s8, v{t}")
                a("s_or_b64 vcc, vcc, s[60:61]")
        a("s_mov_b64 exec, vcc")
        a(f"s_cbranch_execz {D}")
        a("s_sub_u32 s62, s62, 1")
        a(f"s_cbranch_scc1 {D}")
        if slp: a(f"s_sleep {slp}")
        a(f"s_branch {L}")
        a.label(D)
        a("s_mov_b64 exec, -1")
    def tag_from_v5():
        a(f"v_readfirstlane_b32 s8, v5\ns_add_u32 s8, s8, 1\ns_mul_i32 s8, s8, {HASH:#x}")
    def signal(cnt, wait_lds=True):
        if wait_lds: a("s_waitcnt lgkmcnt(0)")
        a("s_mov_b64 exec, 1")
        a(f"ds_add_u32 v62, v63 offset:{cnt-S0}")
        a("s_mov_b64 exec, -1")
    def spin(cnt, target, name):
        L = a.newlabel("Lspin_"+name); D = a.newlabel("Lsd_"+name)
        a(f"s_mov_b32 s62, {poll_limit*8}")
        a.label(L)
        a(f"ds_read_b32 v61, v62 offset:{cnt-S0}")
        a("s_waitcnt lgkmcnt(0)")
        a("v_readfirstlane_b32 s63, v61")
        a(f"s_cmp_ge_u32 s63, {target}")
        a(f"s_cbranch_scc1 {D}")
        a("s_sub_u32 s62, s62, 1")
        a(f"s_cbranch_scc1 {D}")
        if spin_sleep: a(f"s_sleep {spin_sleep}")
        a(f"s_branch {L}")
        a.label(D)

    a(f"""
s_cmp_ge_u32 s2, 256
s_cbranch_scc1 L_end
""")
    stamp_at(0)
    a(f"""
s_load_dwordx16 s[16:31], s[0:1], 0
s_load_dwordx8 s[32:39], s[0:1], 64
s_load_dwordx2 s[40:41], s[0:1], 96
v_lshrrev_b32 v1, 6, v0
v_and_b32 v0, 63, v0
v_readfirstlane_b32 s3, v1
v_and_b32 v1, 15, v0
v_lshrrev_b32 v2, 4, v0
v_and_b32 v3, 3, v0
s_and_b32 s4, s2, 7
s_lshr_b32 s5, s2, 3
s_lshr_b32 s6, s5, 3
s_and_b32 s7, s5, 7
v_mov_b32 v4, 0
v_mov_b32 v62, {S0}
v_mov_b32 v63, 1
s_lshl_b32 s9, s4, 4
s_add_u32 s9, s9, s5
s_mul_i32 s10, s4, 14
s_add_u32 s10, s10, s5
s_add_u32 s10, s10, 112
s_cmp_ge_u32 s5, 16
s_cselect_b32 s9, s10, s9
s_lshl_b32 s10, s4, 1
s_add_u32 s10, s10, s5
s_add_u32 s10, s10, 210
s_cmp_ge_u32 s5, 30
s_cselect_b32 s9, s10, s9
s_mov_b32 s46, {WS_END}
s_mov_b32 s47, 0x00020000
s_mov_b32 s51, 0x00020000
s_mov_b32 s55, 0x00020000
s_mov_b32 s59, 0x00020000
s_cmp_ge_u32 s3, 4
s_cbranch_scc1 L_GB
; ================= group A =================
s_movk_i32 s12, 8192
s_movk_i32 s13, 3584
s_mov_b32 s14, 4194304
s_mov_b32 s15, 1835008
s_cmp_ge_u32 s9, 128
s_cselect_b32 s12, s13, s12
s_cselect_b32 s14, s15, s14
s_cselect_b32 s10, 128, 0
s_cmp_ge_u32 s9, 184
s_cselect_b32 s10, 184, s10
s_sub_u32 s10, s9, s10
s_and_b32 s11, s10, 1
s_lshr_b32 s10, s10, 1
s_lshl_b32 s10, s10, 7
s_lshl_b32 s13, s12, 8
s_mul_i32 s13, s13, s11
s_add_u32 s10, s10, s13
s_sub_u32 s50, s14, s10
s_cmp_ge_u32 s9, 240
s_cselect_b32 s50, 0, s50
v_lshrrev_b32 v6, 3, v0
v_mul_lo_u32 v6, v6, s12
v_and_b32 v8, 7, v0
v_bfe_u32 v9, v0, 4, 1
v_lshlrev_b32 v9, 1, v9
v_xor_b32 v8, v8, v9
v_lshl_add_u32 v6, v8, 4, v6
v_xor_b32 v7, 64, v6
s_lshl_b32 s15, s12, 6
s_mul_i32 s15, s15, s3
s_lshl_b32 s13, s12, 3
s_lshl_b32 s14, s3, 13
s_add_u32 s14, s14, {LVB}
s_mov_b32 m0, s14
s_add_u32 s14, s14, 8192
v_lshlrev_b32 v8, 10, v3
v_lshl_add_u32 v8, v2, 4, v8
v_lshlrev_b32 v9, 4, v2
s_waitcnt lgkmcnt(0)
""")
    stamp_at(14)
    a(f"""
s_mov_b32 s44, s40
s_mov_b32 s45, s41
s_mov_b32 s52, s16
s_mov_b32 s53, s17
s_mov_b32 s54, 4096
s_mov_b32 s56, s34
s_mov_b32 s57, s35
s_mov_b32 s58, 1024
s_lshl_b32 s60, s11, 9
s_lshl_b32 s61, s3, 7
s_add_u32 s60, s60, s61
s_lshl_b32 s61, s3, 8
buffer_load_dword v5, v4, s[44:47], 0 offen sc1
""")
    exec_n4()
    for s in range(2):
        a(f"buffer_load_dwordx4 v[{64+4*s}:{67+4*s}], v8, s[52:55], s60 offen offset:{64*s}")
    for s in range(4):
        a(f"buffer_load_dwordx4 v[{72+4*s}:{75+4*s}], v8, s[52:55], s61 offen offset:{64*s}")
    a("s_mov_b32 exec_lo, 0x00010001\ns_mov_b32 exec_hi, 0x00010001")
    for s in range(4):
        a(f"buffer_load_dwordx4 v[{88+4*s}:{91+4*s}], v9, s[56:59], s61 offen offset:{64*s}")
    exec_all()
    a(f"""
s_cmp_ge_u32 s9, 128
s_cselect_b32 s48, s28, s22
s_cselect_b32 s49, s29, s23
s_cmp_ge_u32 s9, 184
s_cselect_b32 s48, s30, s48
s_cselect_b32 s49, s31, s49
s_add_u32 s48, s48, s10
s_addc_u32 s49, s49, 0
L_W1:
buffer_load_dwordx4 v6, s[48:51], s15 offen{NT} lds
s_add_u32 s15, s15, s13
s_add_u32 m0, m0, 1024
s_nop 0
buffer_load_dwordx4 v7, s[48:51], s15 offen{NT} lds
s_add_u32 s15, s15, s13
s_add_u32 m0, m0, 1024
s_cmp_lt_u32 m0, s14
s_cbranch_scc1 L_W1
""")
    a("s_barrier")
    stamp_at(1)
    a(f"""
v_lshrrev_b32 v8, 2, v1
v_lshl_add_u32 v9, v2, 3, v8
v_lshlrev_b32 v9, 7, v9
v_bfe_u32 v10, v1, 3, 1
v_and_b32 v11, 1, v2
v_lshl_add_u32 v10, v11, 1, v10
v_lshl_add_u32 v9, v10, 5, v9
v_lshl_add_u32 v9, v3, 3, v9
s_lshl_b32 s14, s3, 13
s_add_u32 s14, s14, {LVB}
v_add_u32 v10, s14, v9
v_xor_b32 v11, 32, v10
v_xor_b32 v12, 64, v10
v_xor_b32 v13, 96, v10
v_lshlrev_b32 v8, 6, v2
v_lshl_add_u32 v8, v1, 4, v8
s_mul_i32 s10, s3, 1280
s_add_u32 s10, s10, {PART}
v_add_u32 v8, s10, v8
v_mov_b32 v9, {C_P1}
s_add_u32 s98, s40, {AOFF}
s_addc_u32 s99, s41, 0
s_mov_b32 s52, s98
s_mov_b32 s53, s99
s_mov_b32 s54, {WS_END}
s_mov_b32 s58, {WS_END}
s_waitcnt vmcnt(0)
""")
    stamp_at(2)
    for s in range(2):
        for ct in range(4):
            for hf in range(2):
                r = 104 + (s*4+ct)*4 + 2*hf
                a(f"ds_read_b64_tr_b16 v[{r}:{r+1}], v{10+ct} offset:{s*4096+hf*512}")
    for s in range(4):
        c = "0" if s == 0 else "v[32:35]"
        a(f"v_mfma_f32_16x16x32_bf16 v[32:35], v[{88+4*s}:{91+4*s}], v[{72+4*s}:{75+4*s}], {c}")
    tag_from_v5()
    for s in range(2):
        for ct in range(4):
            c = "0" if s == 0 else f"v[{16+4*ct}:{19+4*ct}]"
            r = 104 + (s*4+ct)*4
            if ct == 0: a(f"s_waitcnt lgkmcnt({8 if s == 0 else 0})")
            a(f"v_mfma_f32_16x16x32_bf16 v[{16+4*ct}:{19+4*ct}], v[{r}:{r+3}], v[{64+4*s}:{67+4*s}], {c}")
    a("s_nop 5")
    exec_n4()
    for t in range(5):
        a(f"ds_write_b128 v8, v[{16+4*t}:{19+4*t}] offset:{256*t}")
    a(f"""
s_mov_b64 exec, 1
s_waitcnt lgkmcnt(0)
ds_add_rtn_u32 v11, v9, v63
s_mov_b64 exec, -1
s_waitcnt lgkmcnt(0)
v_readfirstlane_b32 s10, v11
s_cmp_lg_u32 s10, 3
s_cbranch_scc1 L_QP
v_lshlrev_b32 v8, 4, v0
v_add_u32 v8, {PART}, v8
v_lshlrev_b32 v9, 4, v3
v_add_u32 v9, {PART+1024}, v9
""")
    for w in range(4):
        a(f"ds_read_b128 v[{16+4*w}:{19+4*w}], v8 offset:{1280*w}")
    for w in range(4):
        a(f"ds_read_b32 v{32+w}, v9 offset:{1280*w}")
    a(f"""
v_lshrrev_b32 v10, 2, v0
v_lshlrev_b32 v10, 5, v10
v_lshl_add_u32 v10, v3, 9, v10
s_lshl_b32 s10, s9, 11
s_add_u32 s10, s10, {WS_P1}
v_mov_b32 v41, s8
v_mov_b32 v43, s8
v_mov_b32 v45, s8
v_mov_b32 v47, s8
s_waitcnt lgkmcnt(4)
v_add_f32 v16, v16, v20
v_add_f32 v17, v17, v21
v_add_f32 v18, v18, v22
v_add_f32 v19, v19, v23
v_add_f32 v24, v24, v28
v_add_f32 v25, v25, v29
v_add_f32 v26, v26, v30
v_add_f32 v27, v27, v31
v_add_f32 v40, v16, v24
v_add_f32 v42, v17, v25
v_add_f32 v44, v18, v26
v_add_f32 v46, v19, v27
buffer_store_dwordx4 v[40:43], v10, s[52:55], s10 offen
buffer_store_dwordx4 v[44:47], v10, s[52:55], s10 offen offset:16
buffer_store_dwordx4 v[40:43], v10, s[44:47], s10 offen sc1
buffer_store_dwordx4 v[44:47], v10, s[44:47], s10 offen offset:16 sc1
s_waitcnt lgkmcnt(0)
v_add_f32 v32, v32, v33
v_add_f32 v34, v34, v35
v_add_f32 v32, v32, v34
v_mul_f32 v32, {f32hex(-LOG2E)}, v32
v_exp_f32 v32, v32
v_lshlrev_b32 v9, 2, v0
v_add_f32 v32, 1.0, v32
v_rcp_f32 v32, v32
v_add_u32 v9, {GG}, v9
s_mov_b64 exec, 15
ds_write_b32 v9, v32
s_mov_b64 exec, -1
L_QP:
""")
    stamp_at(3)
    a(f"""
v_lshrrev_b32 v9, 5, v0
v_lshlrev_b32 v9, 12, v9
v_and_b32 v10, 31, v0
v_lshl_add_u32 v9, v10, 4, v9
s_lshl_b32 s10, s4, 4
s_lshl_b32 s11, s3, 2
s_add_u32 s10, s10, s11
s_lshl_b32 s10, s10, 11
s_lshl_b32 s11, s6, 9
s_add_u32 s10, s10, s11
s_add_u32 s10, s10, {WS_P1}
""")
    poll(["buffer_load_dwordx4 v[24:27], v9, s[56:59], s10 offen sc1",
          "buffer_load_dwordx4 v[28:31], v9, s[56:59], s10 offen offset:2048 sc1"], [25, 27, 29, 31], "q", first_sleep=qsleep, dual=True, slp=asleep)
    a(f"""
s_lshl_b32 s10, s3, 8
s_add_u32 s10, s10, {QQ}
v_add_f32 v24, v24, v28
v_add_f32 v26, v26, v30
v_lshlrev_b32 v9, 2, v0
v_add_u32 v9, s10, v9
v_cvt_pk_bf16_f32 v24, v24, v26
ds_write_b32 v9, v24
""")
    signal(C_QK)
    stamp_at(4)
    a(f"""
v_xor_b32 v8, v2, v1
s_lshl_b32 s10, s3, 14
v_lshl_add_u32 v9, v1, 8, s10
v_lshl_add_u32 v10, v8, 4, v9
v_xor_b32 v11, 64, v10
v_xor_b32 v12, 128, v10
v_xor_b32 v13, 192, v10
v_lshlrev_b32 v14, 8, v3
v_lshl_add_u32 v14, v2, 4, v14
v_add_u32 v14, {QQ}, v14
s_mov_b32 s12, {f32hex(SCALE_LOG2E)}
""")
    spin(C_QK, 8, "qk")
    stamp_at(5)
    for j in range(4):
        a(f"ds_read_b128 v[{64+4*j}:{67+4*j}], v14 offset:{64*j}")
    for tt in range(4):
        for j in range(4):
            r = 80+(tt*4+j)*4
            a(f"ds_read_b128 v[{r}:{r+3}], v{10+j} offset:{tt*4096}")
    for tt in range(4):
        a(f"s_waitcnt lgkmcnt({12-4*tt})")
        for j in range(4):
            r = 80+(tt*4+j)*4
            c = "0" if j == 0 else f"v[{16+4*tt}:{19+4*tt}]"
            a(f"v_mfma_f32_16x16x32_bf16 v[{16+4*tt}:{19+4*tt}], v[{r}:{r+3}], v[{64+4*j}:{67+4*j}], {c}")
    a(f"""
v_lshlrev_b32 v36, 6, v2
v_lshl_add_u32 v36, v3, 4, v36
s_lshl_b32 s11, s3, 9
s_add_u32 s11, s11, {PP}
v_add_u32 v37, s11, v36
v_lshlrev_b32 v38, 5, v3
s_lshl_b32 s11, s3, 2
s_add_u32 s11, s11, {ML}
v_add_u32 v39, s11, v38
v_max3_f32 v32, v16, v17, v18
v_max3_f32 v33, v19, v20, v21
v_max3_f32 v32, v32, v22, v23
v_max3_f32 v33, v33, v24, v25
v_max3_f32 v32, v32, v26, v27
v_max3_f32 v33, v33, v28, v29
v_max3_f32 v32, v32, v30, v31
v_max_f32 v32, v32, v33
v_mov_b32 v33, v32
s_nop 1
v_permlane32_swap_b32 v32, v33
v_max_f32 v32, v32, v33
v_mov_b32 v33, v32
s_nop 1
v_permlane16_swap_b32 v32, v33
v_max_f32 v32, v32, v33
v_mul_f32 v32, s12, v32
""")
    for i in range(16):
        a(f"v_fma_f32 v{16+i}, v{16+i}, s12, -v32")
    for i in range(16):
        a(f"v_exp_f32 v{16+i}, v{16+i}")
    for i in range(8):
        a(f"v_cvt_pk_bf16_f32 v{40+i}, v{16+2*i}, v{17+2*i}")
    for i in range(8):
        a(f"v_add_f32 v{16+2*i}, v{16+2*i}, v{17+2*i}")
    a(f"""
v_add_f32 v16, v16, v18
v_add_f32 v20, v20, v22
v_add_f32 v24, v24, v26
v_add_f32 v28, v28, v30
v_add_f32 v16, v16, v20
v_add_f32 v24, v24, v28
v_add_f32 v33, v16, v24
v_mov_b32 v34, v33
""")
    exec_n4()
    a("ds_write_b128 v37, v[40:43]")
    a("ds_write_b128 v37, v[44:47] offset:256")
    exec_all()
    a(f"""
v_permlane32_swap_b32 v33, v34
v_add_f32 v33, v33, v34
v_mov_b32 v34, v33
s_nop 1
v_permlane16_swap_b32 v33, v34
v_add_f32 v33, v33, v34
s_mov_b64 exec, 15
ds_write_b32 v39, v32
ds_write_b32 v39, v33 offset:16
s_mov_b64 exec, -1
""")
    signal(C_P)
    stamp_at(6)
    a(f"""
v_add_u32 v36, {PP}, v36
v_add_u32 v38, {ML}, v38
v_lshrrev_b32 v8, 2, v1
v_lshl_add_u32 v9, v2, 2, v8
v_and_b32 v10, 7, v9
v_lshlrev_b32 v10, 1, v10
v_lshrrev_b32 v11, 1, v3
s_lshl_b32 s10, s3, 2
v_add_u32 v11, s10, v11
v_xor_b32 v10, v10, v11
v_lshlrev_b32 v10, 4, v10
v_lshl_add_u32 v10, v9, 8, v10
v_and_b32 v11, 1, v3
v_lshl_add_u32 v10, v11, 3, v10
v_add_u32 v12, {LV}, v10
v_xor_b32 v13, 32, v12
v_add_u32 v6, {W3}, v10
v_xor_b32 v7, 32, v6
s_lshl_b32 s10, s4, 4
s_add_u32 s10, s10, s6
s_lshl_b32 s10, s10, 3
s_add_u32 s10, s10, s7
v_lshlrev_b32 v14, 14, v1
v_lshl_add_u32 v14, v2, 4, v14
s_lshl_b32 s11, s10, 9
s_lshl_b32 s12, s3, 7
s_add_u32 s11, s11, s12
s_add_u32 s11, s11, {WS_P2}
v_lshlrev_b32 v15, 8, v1
s_lshl_b32 s12, s10, 3
s_add_u32 s12, s12, {WS_P2L}
""")
    HL = ["buffer_load_dwordx4 v[144:147], v59, s[44:47], s96 offen sc1",
          "buffer_load_dwordx4 v[148:151], v59, s[44:47], s96 offen offset:2048 sc1",
          "buffer_load_dwordx4 v[152:155], v59, s[44:47], s97 offen sc1",
          "buffer_load_dwordx4 v[156:159], v59, s[44:47], s97 offen offset:2048 sc1"]
    a(f"""
s_lshl_b32 s13, s4, 2
s_add_u32 s13, s13, s6
s_lshl_b32 s14, s13, 1
s_bfe_u32 s15, s5, 0x10002
s_add_u32 s14, s14, s15
v_min_u32 v8, 13, v1
s_mul_i32 s10, s14, 28
v_lshl_add_u32 v9, v8, 1, s10
v_lshrrev_b32 v59, 6, v9
v_lshlrev_b32 v59, 12, v59
v_and_b32 v11, 63, v9
v_lshl_add_u32 v59, v11, 3, v59
s_lshl_b32 s10, s3, 9
s_add_u32 s96, s10, {WS_P1+128*2048}
s_add_u32 s97, s10, {WS_P1+184*2048}
s_mov_b64 exec, 0xffff
""")
    for ln in HL: a(ln)
    exec_all()
    spin(C_P, 4, "p")
    for s in range(8):
        a(f"ds_read_b128 v[{64+4*s}:{67+4*s}], v36 offset:{256*s}")
    a(f"""
ds_read_b128 v[48:51], v38
ds_read_b128 v[52:55], v38 offset:16
s_waitcnt lgkmcnt(0)
v_max3_f32 v56, v48, v49, v50
v_max_f32 v56, v56, v51
v_sub_f32 v48, v48, v56
v_sub_f32 v49, v49, v56
v_sub_f32 v50, v50, v56
v_sub_f32 v51, v51, v56
v_exp_f32 v48, v48
v_exp_f32 v49, v49
v_exp_f32 v50, v50
v_exp_f32 v51, v51
s_nop 0
v_mul_f32 v57, v48, v52
v_fmac_f32 v57, v49, v53
v_fmac_f32 v57, v50, v54
v_fmac_f32 v57, v51, v55
v_rcp_f32 v58, v57
v_log_f32 v52, v57
v_mov_b32 v53, s8
v_mul_f32 v48, v48, v58
v_mul_f32 v49, v49, v58
v_mul_f32 v50, v50, v58
v_mul_f32 v51, v51, v58
v_add_f32 v52, v52, v56
""")
    def pv_stage(st):
        for u in range(2):
            for sl in range(4):
                s = st*4 + sl
                for hf in range(2):
                    r = 96 + (u*4+sl)*4 + 2*hf
                    a(f"ds_read_b64_tr_b16 v[{r}:{r+1}], v{12+u} offset:{s*8192+hf*4096}")
        n = 16
        for u in range(2):
            for sl in range(4):
                s = st*4 + sl
                tq = s >> 1
                r = 96 + (u*4+sl)*4
                acc = 16 + (u*4+tq)*4
                n -= 2
                a(f"s_waitcnt lgkmcnt({n})")
                c = "0" if (s & 1) == 0 else f"v[{acc}:{acc+3}]"
                a(f"v_mfma_f32_16x16x32_bf16 v[{acc}:{acc+3}], v[{r}:{r+3}], v[{64+4*s}:{67+4*s}], {c}")
    spin(C_VA, 4, "va")
    pv_stage(0)
    a("s_nop 7")
    for u in range(2):
        for r in range(4):
            a(f"v_mul_f32 v{128+4*u+r}, v48, v{16+(u*4+0)*4+r}")
        for r in range(4):
            a(f"v_fmac_f32 v{128+4*u+r}, v49, v{16+(u*4+1)*4+r}")
    a("v_mov_b32 v137, s8\nv_mov_b32 v139, s8\nv_mov_b32 v141, s8\nv_mov_b32 v143, s8")
    spin(C_VB, 4, "vb")
    stamp_at(7)
    pv_stage(1)
    a("s_nop 7")
    for u in range(2):
        for r in range(4):
            a(f"v_fmac_f32 v{128+4*u+r}, v50, v{16+(u*4+2)*4+r}")
        for r in range(4):
            a(f"v_fmac_f32 v{128+4*u+r}, v51, v{16+(u*4+3)*4+r}")
        a(f"v_cvt_pk_bf16_f32 v{136+4*u}, v{128+4*u}, v{129+4*u}")
        a(f"v_cvt_pk_bf16_f32 v{138+4*u}, v{130+4*u}, v{131+4*u}")
    exec_n4()
    a("buffer_store_dwordx4 v[136:139], v14, s[52:55], s11 offen")
    a("buffer_store_dwordx4 v[140:143], v14, s[52:55], s11 offen offset:64")
    a(f"""
s_cmp_lg_u32 s3, 0
s_cbranch_scc1 L_NOLSE
s_mov_b64 exec, 15
buffer_store_dwordx2 v[52:53], v15, s[52:55], s12 offen
buffer_store_dwordx2 v[52:53], v15, s[44:47], s12 offen sc1
s_mov_b32 exec_lo, 0x000F000F
s_mov_b32 exec_hi, 0x000F000F
L_NOLSE:
buffer_store_dwordx4 v[136:139], v14, s[44:47], s11 offen sc1
buffer_store_dwordx4 v[140:143], v14, s[44:47], s11 offen offset:64 sc1
s_mov_b64 exec, -1
""")
    signal(C_S, wait_lds=False)
    stamp_at(8)
    a(f"""
s_lshl_b32 s13, s4, 2
s_add_u32 s13, s13, s6
s_lshl_b32 s14, s13, 1
s_bfe_u32 s15, s5, 0x10002
s_add_u32 s14, s14, s15
s_and_b32 s9, s5, 3
s_lshl_b32 s10, s13, 2
s_add_u32 s10, s10, s3
s_lshl_b32 s11, s10, 12
s_lshl_b32 s12, s15, 8
s_add_u32 s11, s11, s12
s_add_u32 s11, s11, {WS_P2}
s_lshl_b32 s12, s10, 6
s_add_u32 s12, s12, {WS_P2L}
v_lshlrev_b32 v10, 4, v1
v_lshl_add_u32 v10, v2, 10, v10
v_lshlrev_b32 v11, 4, v2
v_xor_b32 v14, 16, v11
v_xor_b32 v15, 32, v11
v_xor_b32 v9, 48, v11
""")
    poll(HL, [145+2*i for i in range(8)], "h", mask="s_mov_b64 exec, 0xffff", preissued=True)
    a(f"""
v_add_f32 v16, v144, v148
v_add_f32 v17, v146, v150
v_add_f32 v18, v152, v156
v_add_f32 v19, v154, v158
v_mul_f32 v20, {f32hex(-LOG2E)}, v16
v_mul_f32 v21, {f32hex(-LOG2E)}, v17
v_exp_f32 v20, v20
v_exp_f32 v21, v21
v_mul_f32 v16, v16, v18
v_add_f32 v20, 1.0, v20
v_add_f32 v21, 1.0, v21
v_rcp_f32 v20, v20
v_rcp_f32 v21, v21
v_mul_f32 v17, v17, v19
v_mul_f32 v16, v16, v20
v_mul_f32 v17, v17, v21
v_cvt_pk_bf16_f32 v16, v16, v17
v_cmp_gt_u32 vcc, 14, v1
v_bfe_u32 v23, v1, 1, 2
v_lshlrev_b32 v22, 4, v23
v_lshrrev_b32 v23, 3, v1
v_lshl_add_u32 v22, v23, 3, v22
v_and_b32 v23, 1, v1
v_lshl_add_u32 v22, v23, 2, v22
s_lshl_b32 s10, s3, 6
s_add_u32 s10, s10, {XH}
v_add_u32 v22, s10, v22
v_cndmask_b32 v16, 0, v16, vcc
s_mov_b64 exec, 0xffff
ds_write_b32 v22, v16
s_mov_b64 exec, -1
""")
    spin(C_S, 4, "s")
    loads = [f"buffer_load_dwordx4 v[{64+4*i}:{67+4*i}], v10, s[56:59], s11 offen offset:{512*i} sc1" for i in range(2)]
    loads += ["buffer_load_dwordx4 v[72:75], v11, s[56:59], s12 offen sc1",
              "buffer_load_dwordx4 v[76:79], v14, s[56:59], s12 offen sc1",
              "buffer_load_dwordx4 v[80:83], v15, s[56:59], s12 offen sc1",
              "buffer_load_dwordx4 v[84:87], v9, s[56:59], s12 offen sc1"]
    tags = [65+2*i for i in range(12)]
    poll(loads, tags, "o", first_sleep=osleep, dual=True, slp=asleep)
    stamp_at(9)
    a(f"""
v_max3_f32 v16, v72, v74, v76
v_max3_f32 v17, v78, v80, v82
v_max3_f32 v16, v16, v84, v86
v_max_f32 v16, v16, v17
v_sub_f32 v72, v72, v16
v_sub_f32 v74, v74, v16
v_sub_f32 v76, v76, v16
v_sub_f32 v78, v78, v16
v_sub_f32 v80, v80, v16
v_sub_f32 v82, v82, v16
v_sub_f32 v84, v84, v16
v_sub_f32 v86, v86, v16
v_exp_f32 v72, v72
v_exp_f32 v74, v74
v_exp_f32 v76, v76
v_exp_f32 v78, v78
v_exp_f32 v80, v80
v_exp_f32 v82, v82
v_exp_f32 v84, v84
v_exp_f32 v86, v86
v_lshlrev_b32 v40, 16, v64
v_and_b32 v41, 0xffff0000, v64
v_lshlrev_b32 v42, 16, v66
v_and_b32 v43, 0xffff0000, v66
v_lshlrev_b32 v44, 16, v68
v_and_b32 v45, 0xffff0000, v68
v_lshlrev_b32 v46, 16, v70
v_and_b32 v47, 0xffff0000, v70
v_mul_f32 v18, v72, v40
v_mul_f32 v19, v72, v41
v_mul_f32 v20, v72, v42
v_mul_f32 v21, v72, v43
v_fmac_f32 v18, v74, v44
v_fmac_f32 v19, v74, v45
v_fmac_f32 v20, v74, v46
v_fmac_f32 v21, v74, v47
v_add_f32 v16, v72, v74
v_add_f32 v17, v76, v78
v_add_f32 v22, v80, v82
v_add_f32 v23, v84, v86
v_mov_b32 v24, v18
v_mov_b32 v25, v19
v_mov_b32 v26, v20
v_mov_b32 v27, v21
v_add_f32 v16, v16, v17
v_add_f32 v22, v22, v23
v_permlane32_swap_b32 v18, v24
v_permlane32_swap_b32 v19, v25
v_permlane32_swap_b32 v20, v26
v_permlane32_swap_b32 v21, v27
v_add_f32 v16, v16, v22
v_add_f32 v18, v18, v24
v_add_f32 v19, v19, v25
v_add_f32 v20, v20, v26
v_add_f32 v21, v21, v27
v_rcp_f32 v16, v16
v_mov_b32 v24, v18
v_mov_b32 v25, v19
v_mov_b32 v26, v20
v_mov_b32 v27, v21
v_lshrrev_b32 v22, 3, v1
v_lshlrev_b32 v22, 8, v22
v_permlane16_swap_b32 v18, v24
v_permlane16_swap_b32 v19, v25
v_permlane16_swap_b32 v20, v26
v_permlane16_swap_b32 v21, v27
v_lshl_add_u32 v22, v3, 4, v22
v_add_f32 v18, v18, v24
v_add_f32 v19, v19, v25
v_add_f32 v20, v20, v26
v_add_f32 v21, v21, v27
v_bfe_u32 v23, v1, 2, 1
v_lshl_add_u32 v22, v23, 3, v22
v_mul_f32 v18, v18, v16
v_mul_f32 v19, v19, v16
v_mul_f32 v20, v20, v16
v_mul_f32 v21, v21, v16
s_lshl_b32 s10, s3, 6
s_add_u32 s10, s10, {XO}
v_cvt_pk_bf16_f32 v18, v18, v19
v_cvt_pk_bf16_f32 v19, v20, v21
v_add_u32 v22, s10, v22
ds_write_b64 v22, v[18:19]
""")
    signal(C_X)
    a(f"""
v_lshlrev_b32 v8, 6, v3
v_lshl_add_u32 v8, v2, 4, v8
v_add_u32 v9, {XO}, v8
v_lshlrev_b32 v10, 2, v3
v_add_u32 v10, {GG}, v10
v_lshlrev_b32 v14, 18, v1
v_lshrrev_b32 v15, 1, v2
v_lshl_add_u32 v14, v15, 12, v14
v_and_b32 v15, 1, v2
v_lshl_add_u32 v14, v15, 5, v14
s_lshl_b32 s10, s9, 4
s_lshl_b32 s11, s3, 2
s_add_u32 s10, s10, s11
s_lshl_b32 s10, s10, 12
s_lshl_b32 s11, s14, 6
s_add_u32 s10, s10, s11
s_add_u32 s10, s10, {WS_P3}
s_add_u32 s11, s10, 8192
v_mov_b32 v41, s8
v_mov_b32 v43, s8
v_mov_b32 v45, s8
v_mov_b32 v47, s8
v_mov_b32 v49, s8
v_mov_b32 v51, s8
v_mov_b32 v53, s8
v_mov_b32 v55, s8
""")
    spin(C_X, 8, "x")
    stamp_at(10)
    a(f"""
ds_read_b128 v[64:67], v9
ds_read_b128 v[68:71], v9 offset:256
ds_read_b128 v[72:75], v9 offset:{XH-XO}
ds_read_b32 v11, v10
""")
    for u in range(2):
        for s in range(3):
            for hf in range(2):
                r = 96 + (u*3+s)*4 + 2*hf
                a(f"ds_read_b64_tr_b16 v[{r}:{r+1}], v{6+u} offset:{s*8192+hf*4096}")
    a("s_waitcnt lgkmcnt(0)")
    for u in range(2):
        b0 = 16 + 8*u
        r = 96 + u*12
        a(f"v_mfma_f32_16x16x32_bf16 v[{b0+4}:{b0+7}], v[{r+8}:{r+11}], v[72:75], 0")
        a(f"v_mfma_f32_16x16x32_bf16 v[{b0}:{b0+3}], v[{r}:{r+3}], v[64:67], 0")
        a(f"v_mfma_f32_16x16x32_bf16 v[{b0}:{b0+3}], v[{r+4}:{r+7}], v[68:71], v[{b0}:{b0+3}]")
    a("v_sub_f32 v12, 1.0, v11")
    a("s_nop 2")
    for u in range(2):
        b0 = 16 + 8*u
        if u == 1: a("s_nop 0")
        for r in range(4):
            a(f"v_mul_f32 v{b0+4+r}, v{b0+4+r}, v12")
        for r in range(4):
            a(f"v_fma_f32 v{40+8*u+2*r}, v{b0+r}, v11, v{b0+4+r}")
    exec_n4()
    a("buffer_store_dwordx4 v[40:43], v14, s[44:47], s10 offen sc1")
    a("buffer_store_dwordx4 v[44:47], v14, s[44:47], s10 offen offset:16 sc1")
    a("buffer_store_dwordx4 v[48:51], v14, s[44:47], s11 offen sc1")
    a("buffer_store_dwordx4 v[52:55], v14, s[44:47], s11 offen offset:16 sc1")
    exec_all()
    signal(C_S2, wait_lds=False)
    stamp_at(11)
    a(f"""
s_cmp_lg_u32 s3, 0
s_cbranch_scc1 L_FIN
s_lshl_b32 s10, s2, 12
s_add_u32 s10, s10, {WS_P3}
v_lshlrev_b32 v8, 4, v0
""")
    spin(C_S2, 4, "s2")
    loads = [f"buffer_load_dwordx4 v[{64+4*i}:{67+4*i}], v8, s[44:47], s10 offen offset:{1024*i} sc1" for i in range(4)]
    poll(loads, [65+2*i for i in range(8)], "y", first_sleep=ysleep)
    stamp_at(12)
    a(f"""
v_add_f32 v16, v64, v68
v_add_f32 v17, v66, v70
v_add_f32 v18, v72, v76
v_add_f32 v19, v74, v78
v_add_f32 v16, v16, v18
v_add_f32 v17, v17, v19
s_nop 1
v_add_f32_dpp v16, v16, v16 row_ror:4 row_mask:0xf bank_mask:0xf
v_add_f32_dpp v17, v17, v17 row_ror:4 row_mask:0xf bank_mask:0xf
s_nop 1
v_add_f32_dpp v16, v16, v16 row_ror:8 row_mask:0xf bank_mask:0xf
v_add_f32_dpp v17, v17, v17 row_ror:8 row_mask:0xf bank_mask:0xf
v_mov_b32 v18, v16
v_mov_b32 v19, v17
s_nop 1
v_permlane16_swap_b32 v16, v18
v_permlane16_swap_b32 v17, v19
v_add_f32 v16, v16, v18
v_add_f32 v17, v17, v19
v_mov_b32 v18, v16
v_mov_b32 v19, v17
s_nop 1
v_permlane32_swap_b32 v16, v18
v_permlane32_swap_b32 v17, v19
v_add_f32 v16, v16, v18
v_add_f32 v17, v17, v19
s_mov_b32 s48, s36
s_mov_b32 s49, s37
s_mov_b32 s50, 4096
v_cvt_pk_bf16_f32 v16, v16, v17
v_lshlrev_b32 v8, 2, v0
s_lshl_b32 s10, s2, 4
s_mov_b64 exec, 15
buffer_store_dword v16, v8, s[48:51], s10 offen
s_cmp_lg_u32 s2, 0
s_cbranch_scc1 L_FIN
s_mov_b64 exec, 1
v_add_u32 v5, 1, v5
buffer_store_dword v5, v4, s[44:47], 0 offen sc1
s_branch L_FIN
""")
    a.label("L_GB")
    a(f"""
s_sub_u32 s9, s3, 4
s_lshl_b32 s10, s6, 3
s_add_u32 s10, s10, s4
s_lshl_b32 s10, s10, 21
s_lshl_b32 s11, s7, 16
s_add_u32 s13, s10, s11
s_add_u32 s13, s13, {6144*256}
s_mov_b32 s50, 65536
s_mov_b32 s54, 65536
s_mul_i32 s10, s2, {rot}
s_add_u32 s10, s10, s9
s_and_b32 s10, s10, 63
s_and_b32 s11, s10, 3
s_lshl_b32 s11, s11, 2
v_add_u32 v6, s11, v2
v_xor_b32 v6, v6, v1
v_lshlrev_b32 v6, 4, v6
v_lshl_add_u32 v6, v2, 8, v6
s_and_b32 s11, s10, 1
s_lshl_b32 s11, s11, 2
v_add_u32 v7, s11, v2
v_lshlrev_b32 v7, 1, v7
v_xor_b32 v7, v7, v1
v_lshlrev_b32 v7, 4, v7
v_lshl_add_u32 v7, v2, 8, v7
v_mov_b32 v8, 0
v_mov_b32 v9, 0
v_mov_b32 v10, 0
v_mov_b32 v11, 0
ds_write_b128 v62, v[8:11]
ds_write_b128 v62, v[8:11] offset:16
v_mov_b32 v60, {C_QK}
s_mov_b32 s12, 16
s_waitcnt lgkmcnt(0)
""")
    stamp_at(14)
    a(f"""
s_add_u32 s48, s18, s13
s_addc_u32 s49, s19, 0
s_add_u32 s52, s20, s13
s_addc_u32 s53, s21, 0
s_mov_b32 s44, s40
s_mov_b32 s45, s41
{"s_barrier" if pre == 0 else ""}
L_KL:
s_lshl_b32 s11, s10, 10
s_mov_b32 m0, s11
s_add_u32 s10, s10, 4
s_and_b32 s10, s10, 63
s_waitcnt vmcnt({depth-1})
buffer_load_dwordx4 v6, s[48:51], s11 offen{NT} lds
s_sub_u32 s12, s12, 1
{"" if pre == 0 else f"s_cmp_lg_u32 s12, {16-pre}" + chr(10) + "s_cbranch_scc1 L_KL2" + chr(10) + "s_barrier" + chr(10) + "L_KL2:"}
s_cmp_lg_u32 s12, 0
s_cbranch_scc1 L_KL
s_and_b32 s10, s10, 31
s_mov_b32 s13, 0
""")
    stamp_at(2)
    a(f"""
L_VH:
s_mov_b32 s12, 8
L_VL:
s_lshl_b32 s11, s10, 10
s_add_u32 s11, s11, s13
s_add_u32 m0, s11, {LV}
s_add_u32 s10, s10, 4
s_and_b32 s10, s10, 31
s_waitcnt vmcnt({depth-1})
s_cmp_lg_u32 s12, {8-(depth-1)}
s_cbranch_scc1 L_VL2
s_mov_b64 exec, 1
ds_add_u32 v60, v63
s_mov_b64 exec, -1
L_VL2:
buffer_load_dwordx4 v7, s[52:55], s11 offen{NT} lds
s_sub_u32 s12, s12, 1
s_cmp_lg_u32 s12, 0
s_cbranch_scc1 L_VL
s_cmp_lg_u32 s13, 0
s_cbranch_scc1 L_VDONE
s_mov_b32 s13, 32768
v_mov_b32 v60, {C_VA}
""")
    spin(C_P1, 4, "p1")
    a("s_branch L_VH")
    a.label("L_VDONE")
    stamp_at(3)
    a(f"""
s_lshl_b32 s10, s4, 2
s_add_u32 s10, s10, s6
s_lshl_b32 s14, s10, 1
s_bfe_u32 s11, s5, 0x10002
s_add_u32 s14, s14, s11
s_and_b32 s11, s5, 3
s_lshl_b32 s11, s11, 8
s_lshl_b32 s12, s14, 16
s_add_u32 s12, s12, s11
s_add_u32 s48, s24, s12
s_addc_u32 s49, s25, 0
s_sub_u32 s50, 4194304, s12
s_mul_i32 s12, s14, {28*1024}
s_add_u32 s12, s12, s11
s_add_u32 s52, s32, s12
s_addc_u32 s53, s33, 0
s_sub_u32 s54, 1835008, s12
v_lshlrev_b32 v6, 1, v2
v_xor_b32 v6, v6, v1
v_lshlrev_b32 v6, 4, v6
v_lshl_add_u32 v6, v2, 10, v6
v_xor_b32 v7, 0x80, v6
s_lshl_b32 s10, s9, 14
s_lshl_b32 s11, s9, 12
s_add_u32 s11, s11, {W3}
""")
    k = 0
    def w3step(srd, vreg, soff_line, m0_line):
        nonlocal k
        a(m0_line); a(soff_line)
        a(f"s_waitcnt vmcnt({depth-1})")
        if k == depth-1: signal(C_VB, wait_lds=False)
        a(f"buffer_load_dwordx4 v{vreg}, {srd}, s12 offen{NT} lds")
        k += 1
    for ii in range(4):
        w3step("s[48:51]", 6+(ii&1), f"s_add_u32 s12, s10, {ii*4096}", f"s_add_u32 m0, s11, {ii*1024}")
    a(f"""
s_lshl_b32 s10, s9, 13
s_lshl_b32 s11, s9, 11
s_add_u32 s11, s11, {W3+16384}
""")
    for ii in range(2):
        w3step("s[52:55]", 6+(ii&1), f"s_add_u32 s12, s10, {ii*4096}\ns_min_u32 s12, s12, {6*4096}", f"s_add_u32 m0, s11, {ii*1024}")
    if depth-1 >= 6:
        a("s_waitcnt vmcnt(6)"); signal(C_VB, wait_lds=False)
    stamp_at(4)
    a.label("L_GBEND")
    a("s_waitcnt vmcnt(0)")
    signal(C_X, wait_lds=False)
    stamp_at(10)
    a.label("L_FIN")
    a("s_mov_b64 exec, -1")
    if stamps:
        stamp_at(13)
        a(f"""
s_waitcnt lgkmcnt(0) vmcnt(0)
s_mov_b32 s46, {WS_STAMP+256*8*64}
s_lshl_b32 s10, s2, 3
s_add_u32 s10, s10, s3
s_lshl_b32 s10, s10, 6
s_add_u32 s10, s10, {WS_STAMP}
v_mov_b32 v4, 0
s_mov_b64 exec, 1
""")
        for i in range(15):
            a(f"v_mov_b32 v6, s{64+2*i}")
            a(f"buffer_store_dword v6, v4, s[44:47], s10 offen offset:{4*i}")
        a("s_getreg_b32 s11, hwreg(HW_REG_XCC_ID)")
        a("v_mov_b32 v6, s11")
        a(f"buffer_store_dword v6, v4, s[44:47], s10 offen offset:{4*15}")
    a("L_end:")
    a("s_endpgm")
    return a.text()

HEADER = open("gated_mix__sliding_block_cached__glu_gated_swiglu__decode.s.ref").read().split("; Override launch geometry")[0]

def full(**kw):
    return wrap(gen(**kw), 256, 512, 163840, vgpr=160, sgpr=102, header=HEADER)

if __name__ == "__main__":
    open("k5.s", "w").write(full())
    open("k5_diag.s", "w").write(full(stamps=True))
    for nm, kw in {"d8": dict(depth=8), "d5": dict(depth=5), "pre0": dict(pre=0), "pre3": dict(pre=3)}.items():
        open(f"k5_diag_{nm}.s", "w").write(full(stamps=True, **kw))
```

```python
import sys
from gen_common import *

WS_P1  = 0x1000
WS_P2L = 0x82000
WS_P2  = 0x90000
WS_P3  = 0x110000
WS_END = 0x210000
WS_STAMP = 0x300000
AOFF = 0x400000
LK, LV, LVB, LC = 0, 65536, 98304, 131072
W3 = LC
S0 = LC + 24576
C_P1, C_QK, C_VA, C_VB, C_P, C_X, C_S, C_S2 = [S0 + 4*i for i in range(8)]
GG, ML, QQ, XO, XH, PP = S0+32, S0+128, S0+512, S0+6656, S0+7168, S0+2560
PART = S0 + 1536
HASH = 0x9E3779B1
SCALE_LOG2E = 0.08838834764831845 * 1.4426950408889634
LOG2E = 1.4426950408889634

def f32hex(x):
    import struct
    return "0x%08x" % struct.unpack("<I", struct.pack("<f", x))[0]

def gen(stamps=False, nt=True, depth=6, rot=5, poll_limit=20000, sleep=4, pre=1, spin_sleep=1, qsleep=2, osleep=0, ysleep=0, bper=4, asleep=1, cpf=False):
    a = Asm()
    NT = " nt" if nt else ""
    def stamp_at(i):
        if stamps:
            a(f"s_memrealtime s[{64+2*i}:{65+2*i}]")
    def exec_n4():
        a("s_mov_b32 exec_lo, 0x000F000F\ns_mov_b32 exec_hi, 0x000F000F")
    def exec_all():
        a("s_mov_b64 exec, -1")
    def poll(loads, tags, name, first_sleep=0, mask=None, preissued=False, dual=False, slp=None):
        L = a.newlabel("Lpoll_"+name); D = a.newlabel("Ldone_"+name); C = a.newlabel("Lchk_"+name)
        if slp is None: slp = sleep
        lim = poll_limit - (poll_limit % bper) + bper - 1
        a(f"s_mov_b32 s62, {lim}")
        if first_sleep:
            n = first_sleep
            while n > 0:
                a(f"s_sleep {min(n,127)}"); n -= 127
        if mask: a(mask)
        if preissued: a(f"s_branch {C}")
        a.label(L)
        if dual:
            a(f"s_and_b32 s63, s62, {bper-1}")
            a("s_cselect_b32 s56, s98, s40")
            a("s_cselect_b32 s57, s99, s41")
        for ln in loads: a(ln)
        a.label(C)
        a("s_waitcnt vmcnt(0)")
        for i, t in enumerate(tags):
            if i == 0: a(f"v_cmp_ne_u32 vcc, s8, v{t}")
            else:
                a(f"v_cmp_ne_u32 s[60:61], s8, v{t}")
                a("s_or_b64 vcc, vcc, s[60:61]")
        a("s_mov_b64 exec, vcc")
        a(f"s_cbranch_execz {D}")
        a("s_sub_u32 s62, s62, 1")
        a(f"s_cbranch_scc1 {D}")
        if slp: a(f"s_sleep {slp}")
        a(f"s_branch {L}")
        a.label(D)
        a("s_mov_b64 exec, -1")
    def tag_from_v5():
        a(f"v_readfirstlane_b32 s8, v5\ns_add_u32 s8, s8, 1\ns_mul_i32 s8, s8, {HASH:#x}")
    def signal(cnt, wait_lds=True):
        if wait_lds: a("s_waitcnt lgkmcnt(0)")
        a("s_mov_b64 exec, 1")
        a(f"ds_add_u32 v62, v63 offset:{cnt-S0}")
        a("s_mov_b64 exec, -1")
    def spin(cnt, target, name):
        L = a.newlabel("Lspin_"+name); D = a.newlabel("Lsd_"+name)
        a(f"s_mov_b32 s62, {poll_limit*8}")
        a.label(L)
        a(f"ds_read_b32 v61, v62 offset:{cnt-S0}")
        a("s_waitcnt lgkmcnt(0)")
        a("v_readfirstlane_b32 s63, v61")
        a(f"s_cmp_ge_u32 s63, {target}")
        a(f"s_cbranch_scc1 {D}")
        a("s_sub_u32 s62, s62, 1")
        a(f"s_cbranch_scc1 {D}")
        if spin_sleep: a(f"s_sleep {spin_sleep}")
        a(f"s_branch {L}")
        a.label(D)

    a(f"""
s_cmp_ge_u32 s2, 256
s_cbranch_scc1 L_end
""")
    stamp_at(0)
    if cpf:
        a("""
s_getpc_b64 s[10:11]
v_and_b32 v1, 63, v0
v_lshlrev_b32 v1, 7, v1
global_load_dword v61, v1, s[10:11]
""")
    a(f"""
s_load_dwordx16 s[16:31], s[0:1], 0
s_load_dwordx8 s[32:39], s[0:1], 64
s_load_dwordx2 s[40:41], s[0:1], 96
v_lshrrev_b32 v1, 6, v0
v_and_b32 v0, 63, v0
v_readfirstlane_b32 s3, v1
v_and_b32 v1, 15, v0
v_lshrrev_b32 v2, 4, v0
v_and_b32 v3, 3, v0
s_and_b32 s4, s2, 7
s_lshr_b32 s5, s2, 3
s_lshr_b32 s6, s5, 3
s_and_b32 s7, s5, 7
v_mov_b32 v4, 0
v_mov_b32 v62, {S0}
v_mov_b32 v63, 1
s_lshl_b32 s9, s4, 4
s_add_u32 s9, s9, s5
s_mul_i32 s10, s4, 14
s_add_u32 s10, s10, s5
s_add_u32 s10, s10, 112
s_cmp_ge_u32 s5, 16
s_cselect_b32 s9, s10, s9
s_lshl_b32 s10, s4, 1
s_add_u32 s10, s10, s5
s_add_u32 s10, s10, 210
s_cmp_ge_u32 s5, 30
s_cselect_b32 s9, s10, s9
s_mov_b32 s46, {WS_END}
s_mov_b32 s47, 0x00020000
s_mov_b32 s51, 0x00020000
s_mov_b32 s55, 0x00020000
s_mov_b32 s59, 0x00020000
s_cmp_ge_u32 s3, 4
s_cbranch_scc1 L_GB
; ================= group A =================
s_movk_i32 s12, 8192
s_movk_i32 s13, 3584
s_mov_b32 s14, 4194304
s_mov_b32 s15, 1835008
s_cmp_ge_u32 s9, 128
s_cselect_b32 s12, s13, s12
s_cselect_b32 s14, s15, s14
s_cselect_b32 s10, 128, 0
s_cmp_ge_u32 s9, 184
s_cselect_b32 s10, 184, s10
s_sub_u32 s10, s9, s10
s_and_b32 s11, s10, 1
s_lshr_b32 s10, s10, 1
s_lshl_b32 s10, s10, 7
s_lshl_b32 s13, s12, 8
s_mul_i32 s13, s13, s11
s_add_u32 s10, s10, s13
s_sub_u32 s50, s14, s10
s_cmp_ge_u32 s9, 240
s_cselect_b32 s50, 0, s50
v_lshrrev_b32 v6, 3, v0
v_mul_lo_u32 v6, v6, s12
v_and_b32 v8, 7, v0
v_bfe_u32 v9, v0, 4, 1
v_lshlrev_b32 v9, 1, v9
v_xor_b32 v8, v8, v9
v_lshl_add_u32 v6, v8, 4, v6
v_xor_b32 v7, 64, v6
s_lshl_b32 s15, s12, 6
s_mul_i32 s15, s15, s3
s_lshl_b32 s13, s12, 3
s_lshl_b32 s14, s3, 13
s_add_u32 s14, s14, {LVB}
s_mov_b32 m0, s14
s_add_u32 s14, s14, 8192
v_lshlrev_b32 v8, 10, v3
v_lshl_add_u32 v8, v2, 4, v8
v_lshlrev_b32 v9, 4, v2
s_waitcnt lgkmcnt(0)
""")
    stamp_at(14)
    a(f"""
s_mov_b32 s44, s40
s_mov_b32 s45, s41
s_mov_b32 s52, s16
s_mov_b32 s53, s17
s_mov_b32 s54, 4096
s_mov_b32 s56, s34
s_mov_b32 s57, s35
s_mov_b32 s58, 1024
s_lshl_b32 s60, s11, 9
s_lshl_b32 s61, s3, 7
s_add_u32 s60, s60, s61
s_lshl_b32 s61, s3, 8
buffer_load_dword v5, v4, s[44:47], 0 offen sc1
""")
    exec_n4()
    for s in range(2):
        a(f"buffer_load_dwordx4 v[{64+4*s}:{67+4*s}], v8, s[52:55], s60 offen offset:{64*s}")
    for s in range(4):
        a(f"buffer_load_dwordx4 v[{72+4*s}:{75+4*s}], v8, s[52:55], s61 offen offset:{64*s}")
    a("s_mov_b32 exec_lo, 0x00010001\ns_mov_b32 exec_hi, 0x00010001")
    for s in range(4):
        a(f"buffer_load_dwordx4 v[{88+4*s}:{91+4*s}], v9, s[56:59], s61 offen offset:{64*s}")
    exec_all()
    a(f"""
s_cmp_ge_u32 s9, 128
s_cselect_b32 s48, s28, s22
s_cselect_b32 s49, s29, s23
s_cmp_ge_u32 s9, 184
s_cselect_b32 s48, s30, s48
s_cselect_b32 s49, s31, s49
s_add_u32 s48, s48, s10
s_addc_u32 s49, s49, 0
L_W1:
buffer_load_dwordx4 v6, s[48:51], s15 offen{NT} lds
s_add_u32 s15, s15, s13
s_add_u32 m0, m0, 1024
s_nop 0
buffer_load_dwordx4 v7, s[48:51], s15 offen{NT} lds
s_add_u32 s15, s15, s13
s_add_u32 m0, m0, 1024
s_cmp_lt_u32 m0, s14
s_cbranch_scc1 L_W1
""")
    a("s_barrier")
    stamp_at(1)
    a(f"""
v_lshrrev_b32 v8, 2, v1
v_lshl_add_u32 v9, v2, 3, v8
v_lshlrev_b32 v9, 7, v9
v_bfe_u32 v10, v1, 3, 1
v_and_b32 v11, 1, v2
v_lshl_add_u32 v10, v11, 1, v10
v_lshl_add_u32 v9, v10, 5, v9
v_lshl_add_u32 v9, v3, 3, v9
s_lshl_b32 s14, s3, 13
s_add_u32 s14, s14, {LVB}
v_add_u32 v10, s14, v9
v_xor_b32 v11, 32, v10
v_xor_b32 v12, 64, v10
v_xor_b32 v13, 96, v10
v_lshlrev_b32 v8, 6, v2
v_lshl_add_u32 v8, v1, 4, v8
s_mul_i32 s10, s3, 1280
s_add_u32 s10, s10, {PART}
v_add_u32 v8, s10, v8
v_mov_b32 v9, {C_P1}
s_add_u32 s98, s40, {AOFF}
s_addc_u32 s99, s41, 0
s_mov_b32 s52, s98
s_mov_b32 s53, s99
s_mov_b32 s54, {WS_END}
s_mov_b32 s58, {WS_END}
s_waitcnt vmcnt(0)
""")
    stamp_at(2)
    for s in range(2):
        for ct in range(4):
            for hf in range(2):
                r = 104 + (s*4+ct)*4 + 2*hf
                a(f"ds_read_b64_tr_b16 v[{r}:{r+1}], v{10+ct} offset:{s*4096+hf*512}")
    for s in range(4):
        c = "0" if s == 0 else "v[32:35]"
        a(f"v_mfma_f32_16x16x32_bf16 v[32:35], v[{88+4*s}:{91+4*s}], v[{72+4*s}:{75+4*s}], {c}")
    tag_from_v5()
    for s in range(2):
        for ct in range(4):
            c = "0" if s == 0 else f"v[{16+4*ct}:{19+4*ct}]"
            r = 104 + (s*4+ct)*4
            if ct == 0: a(f"s_waitcnt lgkmcnt({8 if s == 0 else 0})")
            a(f"v_mfma_f32_16x16x32_bf16 v[{16+4*ct}:{19+4*ct}], v[{r}:{r+3}], v[{64+4*s}:{67+4*s}], {c}")
    a("s_nop 5")
    exec_n4()
    for t in range(5):
        a(f"ds_write_b128 v8, v[{16+4*t}:{19+4*t}] offset:{256*t}")
    a(f"""
s_mov_b64 exec, 1
s_waitcnt lgkmcnt(0)
ds_add_rtn_u32 v11, v9, v63
s_mov_b64 exec, -1
s_waitcnt lgkmcnt(0)
v_readfirstlane_b32 s10, v11
s_cmp_lg_u32 s10, 3
s_cbranch_scc1 L_QP
v_lshlrev_b32 v8, 4, v0
v_add_u32 v8, {PART}, v8
v_lshlrev_b32 v9, 4, v3
v_add_u32 v9, {PART+1024}, v9
""")
    for w in range(4):
        a(f"ds_read_b128 v[{16+4*w}:{19+4*w}], v8 offset:{1280*w}")
    for w in range(4):
        a(f"ds_read_b32 v{32+w}, v9 offset:{1280*w}")
    a(f"""
v_lshrrev_b32 v10, 2, v0
v_lshlrev_b32 v10, 5, v10
v_lshl_add_u32 v10, v3, 9, v10
s_lshl_b32 s10, s9, 11
s_add_u32 s10, s10, {WS_P1}
v_mov_b32 v41, s8
v_mov_b32 v43, s8
v_mov_b32 v45, s8
v_mov_b32 v47, s8
s_waitcnt lgkmcnt(4)
v_add_f32 v16, v16, v20
v_add_f32 v17, v17, v21
v_add_f32 v18, v18, v22
v_add_f32 v19, v19, v23
v_add_f32 v24, v24, v28
v_add_f32 v25, v25, v29
v_add_f32 v26, v26, v30
v_add_f32 v27, v27, v31
v_add_f32 v40, v16, v24
v_add_f32 v42, v17, v25
v_add_f32 v44, v18, v26
v_add_f32 v46, v19, v27
buffer_store_dwordx4 v[40:43], v10, s[52:55], s10 offen
buffer_store_dwordx4 v[44:47], v10, s[52:55], s10 offen offset:16
buffer_store_dwordx4 v[40:43], v10, s[44:47], s10 offen sc1
buffer_store_dwordx4 v[44:47], v10, s[44:47], s10 offen offset:16 sc1
s_waitcnt lgkmcnt(0)
v_add_f32 v32, v32, v33
v_add_f32 v34, v34, v35
v_add_f32 v32, v32, v34
v_mul_f32 v32, {f32hex(-LOG2E)}, v32
v_exp_f32 v32, v32
v_lshlrev_b32 v9, 2, v0
v_add_f32 v32, 1.0, v32
v_rcp_f32 v32, v32
v_add_u32 v9, {GG}, v9
s_mov_b64 exec, 15
ds_write_b32 v9, v32
s_mov_b64 exec, -1
L_QP:
""")
    stamp_at(3)
    a(f"""
v_lshrrev_b32 v9, 5, v0
v_lshlrev_b32 v9, 12, v9
v_and_b32 v10, 31, v0
v_lshl_add_u32 v9, v10, 4, v9
s_lshl_b32 s10, s4, 4
s_lshl_b32 s11, s3, 2
s_add_u32 s10, s10, s11
s_lshl_b32 s10, s10, 11
s_lshl_b32 s11, s6, 9
s_add_u32 s10, s10, s11
s_add_u32 s10, s10, {WS_P1}
""")
    poll(["buffer_load_dwordx4 v[24:27], v9, s[56:59], s10 offen sc1",
          "buffer_load_dwordx4 v[28:31], v9, s[56:59], s10 offen offset:2048 sc1"], [25, 27, 29, 31], "q", first_sleep=qsleep, dual=True, slp=asleep)
    a(f"""
s_lshl_b32 s10, s3, 8
s_add_u32 s10, s10, {QQ}
v_add_f32 v24, v24, v28
v_add_f32 v26, v26, v30
v_lshlrev_b32 v9, 2, v0
v_add_u32 v9, s10, v9
v_cvt_pk_bf16_f32 v24, v24, v26
ds_write_b32 v9, v24
""")
    signal(C_QK)
    stamp_at(4)
    a(f"""
v_xor_b32 v8, v2, v1
s_lshl_b32 s10, s3, 14
v_lshl_add_u32 v9, v1, 8, s10
v_lshl_add_u32 v10, v8, 4, v9
v_xor_b32 v11, 64, v10
v_xor_b32 v12, 128, v10
v_xor_b32 v13, 192, v10
v_lshlrev_b32 v14, 8, v3
v_lshl_add_u32 v14, v2, 4, v14
v_add_u32 v14, {QQ}, v14
s_mov_b32 s12, {f32hex(SCALE_LOG2E)}
""")
    spin(C_QK, 8, "qk")
    stamp_at(5)
    for j in range(4):
        a(f"ds_read_b128 v[{64+4*j}:{67+4*j}], v14 offset:{64*j}")
    for tt in range(4):
        for j in range(4):
            r = 80+(tt*4+j)*4
            a(f"ds_read_b128 v[{r}:{r+3}], v{10+j} offset:{tt*4096}")
    for tt in range(4):
        a(f"s_waitcnt lgkmcnt({12-4*tt})")
        for j in range(4):
            r = 80+(tt*4+j)*4
            c = "0" if j == 0 else f"v[{16+4*tt}:{19+4*tt}]"
            a(f"v_mfma_f32_16x16x32_bf16 v[{16+4*tt}:{19+4*tt}], v[{r}:{r+3}], v[{64+4*j}:{67+4*j}], {c}")
    a(f"""
v_lshlrev_b32 v36, 6, v2
v_lshl_add_u32 v36, v3, 4, v36
s_lshl_b32 s11, s3, 9
s_add_u32 s11, s11, {PP}
v_add_u32 v37, s11, v36
v_lshlrev_b32 v38, 5, v3
s_lshl_b32 s11, s3, 2
s_add_u32 s11, s11, {ML}
v_add_u32 v39, s11, v38
v_max3_f32 v32, v16, v17, v18
v_max3_f32 v33, v19, v20, v21
v_max3_f32 v32, v32, v22, v23
v_max3_f32 v33, v33, v24, v25
v_max3_f32 v32, v32, v26, v27
v_max3_f32 v33, v33, v28, v29
v_max3_f32 v32, v32, v30, v31
v_max_f32 v32, v32, v33
v_mov_b32 v33, v32
s_nop 1
v_permlane32_swap_b32 v32, v33
v_max_f32 v32, v32, v33
v_mov_b32 v33, v32
s_nop 1
v_permlane16_swap_b32 v32, v33
v_max_f32 v32, v32, v33
v_mul_f32 v32, s12, v32
""")
    for i in range(16):
        a(f"v_fma_f32 v{16+i}, v{16+i}, s12, -v32")
    for i in range(16):
        a(f"v_exp_f32 v{16+i}, v{16+i}")
    for i in range(8):
        a(f"v_cvt_pk_bf16_f32 v{40+i}, v{16+2*i}, v{17+2*i}")
    for i in range(8):
        a(f"v_add_f32 v{16+2*i}, v{16+2*i}, v{17+2*i}")
    a(f"""
v_add_f32 v16, v16, v18
v_add_f32 v20, v20, v22
v_add_f32 v24, v24, v26
v_add_f32 v28, v28, v30
v_add_f32 v16, v16, v20
v_add_f32 v24, v24, v28
v_add_f32 v33, v16, v24
v_mov_b32 v34, v33
""")
    exec_n4()
    a("ds_write_b128 v37, v[40:43]")
    a("ds_write_b128 v37, v[44:47] offset:256")
    exec_all()
    a(f"""
v_permlane32_swap_b32 v33, v34
v_add_f32 v33, v33, v34
v_mov_b32 v34, v33
s_nop 1
v_permlane16_swap_b32 v33, v34
v_add_f32 v33, v33, v34
s_mov_b64 exec, 15
ds_write_b32 v39, v32
ds_write_b32 v39, v33 offset:16
s_mov_b64 exec, -1
""")
    signal(C_P)
    stamp_at(6)
    a(f"""
v_add_u32 v36, {PP}, v36
v_add_u32 v38, {ML}, v38
v_lshrrev_b32 v8, 2, v1
v_lshl_add_u32 v9, v2, 2, v8
v_and_b32 v10, 7, v9
v_lshlrev_b32 v10, 1, v10
v_lshrrev_b32 v11, 1, v3
s_lshl_b32 s10, s3, 2
v_add_u32 v11, s10, v11
v_xor_b32 v10, v10, v11
v_lshlrev_b32 v10, 4, v10
v_lshl_add_u32 v10, v9, 8, v10
v_and_b32 v11, 1, v3
v_lshl_add_u32 v10, v11, 3, v10
v_add_u32 v12, {LV}, v10
v_xor_b32 v13, 32, v12
v_add_u32 v6, {W3}, v10
v_xor_b32 v7, 32, v6
s_lshl_b32 s10, s4, 4
s_add_u32 s10, s10, s6
s_lshl_b32 s10, s10, 3
s_add_u32 s10, s10, s7
v_lshlrev_b32 v14, 14, v1
v_lshl_add_u32 v14, v2, 4, v14
s_lshl_b32 s11, s10, 9
s_lshl_b32 s12, s3, 7
s_add_u32 s11, s11, s12
s_add_u32 s11, s11, {WS_P2}
v_lshlrev_b32 v15, 8, v1
s_lshl_b32 s12, s10, 3
s_add_u32 s12, s12, {WS_P2L}
""")
    HL = ["buffer_load_dwordx4 v[144:147], v59, s[44:47], s96 offen sc1",
          "buffer_load_dwordx4 v[148:151], v59, s[44:47], s96 offen offset:2048 sc1",
          "buffer_load_dwordx4 v[152:155], v59, s[44:47], s97 offen sc1",
          "buffer_load_dwordx4 v[156:159], v59, s[44:47], s97 offen offset:2048 sc1"]
    a(f"""
s_lshl_b32 s13, s4, 2
s_add_u32 s13, s13, s6
s_lshl_b32 s14, s13, 1
s_bfe_u32 s15, s5, 0x10002
s_add_u32 s14, s14, s15
v_min_u32 v8, 13, v1
s_mul_i32 s10, s14, 28
v_lshl_add_u32 v9, v8, 1, s10
v_lshrrev_b32 v59, 6, v9
v_lshlrev_b32 v59, 12, v59
v_and_b32 v11, 63, v9
v_lshl_add_u32 v59, v11, 3, v59
s_lshl_b32 s10, s3, 9
s_add_u32 s96, s10, {WS_P1+128*2048}
s_add_u32 s97, s10, {WS_P1+184*2048}
s_mov_b64 exec, 0xffff
""")
    for ln in HL: a(ln)
    exec_all()
    spin(C_P, 4, "p")
    for s in range(8):
        a(f"ds_read_b128 v[{64+4*s}:{67+4*s}], v36 offset:{256*s}")
    a(f"""
ds_read_b128 v[48:51], v38
ds_read_b128 v[52:55], v38 offset:16
s_waitcnt lgkmcnt(0)
v_max3_f32 v56, v48, v49, v50
v_max_f32 v56, v56, v51
v_sub_f32 v48, v48, v56
v_sub_f32 v49, v49, v56
v_sub_f32 v50, v50, v56
v_sub_f32 v51, v51, v56
v_exp_f32 v48, v48
v_exp_f32 v49, v49
v_exp_f32 v50, v50
v_exp_f32 v51, v51
s_nop 0
v_mul_f32 v57, v48, v52
v_fmac_f32 v57, v49, v53
v_fmac_f32 v57, v50, v54
v_fmac_f32 v57, v51, v55
v_rcp_f32 v58, v57
v_log_f32 v52, v57
v_mov_b32 v53, s8
v_mul_f32 v48, v48, v58
v_mul_f32 v49, v49, v58
v_mul_f32 v50, v50, v58
v_mul_f32 v51, v51, v58
v_add_f32 v52, v52, v56
""")
    def pv_stage(st):
        for u in range(2):
            for sl in range(4):
                s = st*4 + sl
                for hf in range(2):
                    r = 96 + (u*4+sl)*4 + 2*hf
                    a(f"ds_read_b64_tr_b16 v[{r}:{r+1}], v{12+u} offset:{s*8192+hf*4096}")
        n = 16
        for u in range(2):
            for sl in range(4):
                s = st*4 + sl
                tq = s >> 1
                r = 96 + (u*4+sl)*4
                acc = 16 + (u*4+tq)*4
                n -= 2
                a(f"s_waitcnt lgkmcnt({n})")
                c = "0" if (s & 1) == 0 else f"v[{acc}:{acc+3}]"
                a(f"v_mfma_f32_16x16x32_bf16 v[{acc}:{acc+3}], v[{r}:{r+3}], v[{64+4*s}:{67+4*s}], {c}")
    spin(C_VA, 4, "va")
    pv_stage(0)
    a("s_nop 7")
    for u in range(2):
        for r in range(4):
            a(f"v_mul_f32 v{128+4*u+r}, v48, v{16+(u*4+0)*4+r}")
        for r in range(4):
            a(f"v_fmac_f32 v{128+4*u+r}, v49, v{16+(u*4+1)*4+r}")
    a("v_mov_b32 v137, s8\nv_mov_b32 v139, s8\nv_mov_b32 v141, s8\nv_mov_b32 v143, s8")
    spin(C_VB, 4, "vb")
    stamp_at(7)
    pv_stage(1)
    a("s_nop 7")
    for u in range(2):
        for r in range(4):
            a(f"v_fmac_f32 v{128+4*u+r}, v50, v{16+(u*4+2)*4+r}")
        for r in range(4):
            a(f"v_fmac_f32 v{128+4*u+r}, v51, v{16+(u*4+3)*4+r}")
        a(f"v_cvt_pk_bf16_f32 v{136+4*u}, v{128+4*u}, v{129+4*u}")
        a(f"v_cvt_pk_bf16_f32 v{138+4*u}, v{130+4*u}, v{131+4*u}")
    exec_n4()
    a("buffer_store_dwordx4 v[136:139], v14, s[52:55], s11 offen")
    a("buffer_store_dwordx4 v[140:143], v14, s[52:55], s11 offen offset:64")
    a(f"""
s_cmp_lg_u32 s3, 0
s_cbranch_scc1 L_NOLSE
s_mov_b64 exec, 15
buffer_store_dwordx2 v[52:53], v15, s[52:55], s12 offen
buffer_store_dwordx2 v[52:53], v15, s[44:47], s12 offen sc1
s_mov_b32 exec_lo, 0x000F000F
s_mov_b32 exec_hi, 0x000F000F
L_NOLSE:
buffer_store_dwordx4 v[136:139], v14, s[44:47], s11 offen sc1
buffer_store_dwordx4 v[140:143], v14, s[44:47], s11 offen offset:64 sc1
s_mov_b64 exec, -1
""")
    signal(C_S, wait_lds=False)
    stamp_at(8)
    a(f"""
s_lshl_b32 s13, s4, 2
s_add_u32 s13, s13, s6
s_lshl_b32 s14, s13, 1
s_bfe_u32 s15, s5, 0x10002
s_add_u32 s14, s14, s15
s_and_b32 s9, s5, 3
s_lshl_b32 s10, s13, 2
s_add_u32 s10, s10, s3
s_lshl_b32 s11, s10, 12
s_lshl_b32 s12, s15, 8
s_add_u32 s11, s11, s12
s_add_u32 s11, s11, {WS_P2}
s_lshl_b32 s12, s10, 6
s_add_u32 s12, s12, {WS_P2L}
v_lshlrev_b32 v10, 4, v1
v_lshl_add_u32 v10, v2, 10, v10
v_lshlrev_b32 v11, 4, v2
v_xor_b32 v14, 16, v11
v_xor_b32 v15, 32, v11
v_xor_b32 v9, 48, v11
""")
    poll(HL, [145+2*i for i in range(8)], "h", mask="s_mov_b64 exec, 0xffff", preissued=True)
    a(f"""
v_add_f32 v16, v144, v148
v_add_f32 v17, v146, v150
v_add_f32 v18, v152, v156
v_add_f32 v19, v154, v158
v_mul_f32 v20, {f32hex(-LOG2E)}, v16
v_mul_f32 v21, {f32hex(-LOG2E)}, v17
v_exp_f32 v20, v20
v_exp_f32 v21, v21
v_mul_f32 v16, v16, v18
v_add_f32 v20, 1.0, v20
v_add_f32 v21, 1.0, v21
v_rcp_f32 v20, v20
v_rcp_f32 v21, v21
v_mul_f32 v17, v17, v19
v_mul_f32 v16, v16, v20
v_mul_f32 v17, v17, v21
v_cvt_pk_bf16_f32 v16, v16, v17
v_cmp_gt_u32 vcc, 14, v1
v_bfe_u32 v23, v1, 1, 2
v_lshlrev_b32 v22, 4, v23
v_lshrrev_b32 v23, 3, v1
v_lshl_add_u32 v22, v23, 3, v22
v_and_b32 v23, 1, v1
v_lshl_add_u32 v22, v23, 2, v22
s_lshl_b32 s10, s3, 6
s_add_u32 s10, s10, {XH}
v_add_u32 v22, s10, v22
v_cndmask_b32 v16, 0, v16, vcc
s_mov_b64 exec, 0xffff
ds_write_b32 v22, v16
s_mov_b64 exec, -1
""")
    spin(C_S, 4, "s")
    loads = [f"buffer_load_dwordx4 v[{64+4*i}:{67+4*i}], v10, s[56:59], s11 offen offset:{512*i} sc1" for i in range(2)]
    loads += ["buffer_load_dwordx4 v[72:75], v11, s[56:59], s12 offen sc1",
              "buffer_load_dwordx4 v[76:79], v14, s[56:59], s12 offen sc1",
              "buffer_load_dwordx4 v[80:83], v15, s[56:59], s12 offen sc1",
              "buffer_load_dwordx4 v[84:87], v9, s[56:59], s12 offen sc1"]
    tags = [65+2*i for i in range(12)]
    poll(loads, tags, "o", first_sleep=osleep, dual=True, slp=asleep)
    stamp_at(9)
    a(f"""
v_max3_f32 v16, v72, v74, v76
v_max3_f32 v17, v78, v80, v82
v_max3_f32 v16, v16, v84, v86
v_max_f32 v16, v16, v17
v_sub_f32 v72, v72, v16
v_sub_f32 v74, v74, v16
v_sub_f32 v76, v76, v16
v_sub_f32 v78, v78, v16
v_sub_f32 v80, v80, v16
v_sub_f32 v82, v82, v16
v_sub_f32 v84, v84, v16
v_sub_f32 v86, v86, v16
v_exp_f32 v72, v72
v_exp_f32 v74, v74
v_exp_f32 v76, v76
v_exp_f32 v78, v78
v_exp_f32 v80, v80
v_exp_f32 v82, v82
v_exp_f32 v84, v84
v_exp_f32 v86, v86
v_lshlrev_b32 v40, 16, v64
v_and_b32 v41, 0xffff0000, v64
v_lshlrev_b32 v42, 16, v66
v_and_b32 v43, 0xffff0000, v66
v_lshlrev_b32 v44, 16, v68
v_and_b32 v45, 0xffff0000, v68
v_lshlrev_b32 v46, 16, v70
v_and_b32 v47, 0xffff0000, v70
v_mul_f32 v18, v72, v40
v_mul_f32 v19, v72, v41
v_mul_f32 v20, v72, v42
v_mul_f32 v21, v72, v43
v_fmac_f32 v18, v74, v44
v_fmac_f32 v19, v74, v45
v_fmac_f32 v20, v74, v46
v_fmac_f32 v21, v74, v47
v_add_f32 v16, v72, v74
v_add_f32 v17, v76, v78
v_add_f32 v22, v80, v82
v_add_f32 v23, v84, v86
v_mov_b32 v24, v18
v_mov_b32 v25, v19
v_mov_b32 v26, v20
v_mov_b32 v27, v21
v_add_f32 v16, v16, v17
v_add_f32 v22, v22, v23
v_permlane32_swap_b32 v18, v24
v_permlane32_swap_b32 v19, v25
v_permlane32_swap_b32 v20, v26
v_permlane32_swap_b32 v21, v27
v_add_f32 v16, v16, v22
v_add_f32 v18, v18, v24
v_add_f32 v19, v19, v25
v_add_f32 v20, v20, v26
v_add_f32 v21, v21, v27
v_rcp_f32 v16, v16
v_mov_b32 v24, v18
v_mov_b32 v25, v19
v_mov_b32 v26, v20
v_mov_b32 v27, v21
v_lshrrev_b32 v22, 3, v1
v_lshlrev_b32 v22, 8, v22
v_permlane16_swap_b32 v18, v24
v_permlane16_swap_b32 v19, v25
v_permlane16_swap_b32 v20, v26
v_permlane16_swap_b32 v21, v27
v_lshl_add_u32 v22, v3, 4, v22
v_add_f32 v18, v18, v24
v_add_f32 v19, v19, v25
v_add_f32 v20, v20, v26
v_add_f32 v21, v21, v27
v_bfe_u32 v23, v1, 2, 1
v_lshl_add_u32 v22, v23, 3, v22
v_mul_f32 v18, v18, v16
v_mul_f32 v19, v19, v16
v_mul_f32 v20, v20, v16
v_mul_f32 v21, v21, v16
s_lshl_b32 s10, s3, 6
s_add_u32 s10, s10, {XO}
v_cvt_pk_bf16_f32 v18, v18, v19
v_cvt_pk_bf16_f32 v19, v20, v21
v_add_u32 v22, s10, v22
ds_write_b64 v22, v[18:19]
""")
    signal(C_X)
    a(f"""
v_lshlrev_b32 v8, 6, v3
v_lshl_add_u32 v8, v2, 4, v8
v_add_u32 v9, {XO}, v8
v_lshlrev_b32 v10, 2, v3
v_add_u32 v10, {GG}, v10
v_lshlrev_b32 v14, 18, v1
v_lshrrev_b32 v15, 1, v2
v_lshl_add_u32 v14, v15, 12, v14
v_and_b32 v15, 1, v2
v_lshl_add_u32 v14, v15, 5, v14
s_lshl_b32 s10, s9, 4
s_lshl_b32 s11, s3, 2
s_add_u32 s10, s10, s11
s_lshl_b32 s10, s10, 12
s_lshl_b32 s11, s14, 6
s_add_u32 s10, s10, s11
s_add_u32 s10, s10, {WS_P3}
s_add_u32 s11, s10, 8192
v_mov_b32 v41, s8
v_mov_b32 v43, s8
v_mov_b32 v45, s8
v_mov_b32 v47, s8
v_mov_b32 v49, s8
v_mov_b32 v51, s8
v_mov_b32 v53, s8
v_mov_b32 v55, s8
""")
    spin(C_X, 8, "x")
    stamp_at(10)
    a(f"""
ds_read_b128 v[64:67], v9
ds_read_b128 v[68:71], v9 offset:256
ds_read_b128 v[72:75], v9 offset:{XH-XO}
ds_read_b32 v11, v10
""")
    for u in range(2):
        for s in range(3):
            for hf in range(2):
                r = 96 + (u*3+s)*4 + 2*hf
                a(f"ds_read_b64_tr_b16 v[{r}:{r+1}], v{6+u} offset:{s*8192+hf*4096}")
    a("s_waitcnt lgkmcnt(0)")
    for u in range(2):
        b0 = 16 + 8*u
        r = 96 + u*12
        a(f"v_mfma_f32_16x16x32_bf16 v[{b0+4}:{b0+7}], v[{r+8}:{r+11}], v[72:75], 0")
        a(f"v_mfma_f32_16x16x32_bf16 v[{b0}:{b0+3}], v[{r}:{r+3}], v[64:67], 0")
        a(f"v_mfma_f32_16x16x32_bf16 v[{b0}:{b0+3}], v[{r+4}:{r+7}], v[68:71], v[{b0}:{b0+3}]")
    a("v_sub_f32 v12, 1.0, v11")
    a("s_nop 2")
    for u in range(2):
        b0 = 16 + 8*u
        if u == 1: a("s_nop 0")
        for r in range(4):
            a(f"v_mul_f32 v{b0+4+r}, v{b0+4+r}, v12")
        for r in range(4):
            a(f"v_fma_f32 v{40+8*u+2*r}, v{b0+r}, v11, v{b0+4+r}")
    exec_n4()
    a("buffer_store_dwordx4 v[40:43], v14, s[44:47], s10 offen sc1")
    a("buffer_store_dwordx4 v[44:47], v14, s[44:47], s10 offen offset:16 sc1")
    a("buffer_store_dwordx4 v[48:51], v14, s[44:47], s11 offen sc1")
    a("buffer_store_dwordx4 v[52:55], v14, s[44:47], s11 offen offset:16 sc1")
    exec_all()
    signal(C_S2, wait_lds=False)
    stamp_at(11)
    a(f"""
s_cmp_lg_u32 s3, 0
s_cbranch_scc1 L_FIN
s_lshl_b32 s10, s2, 12
s_add_u32 s10, s10, {WS_P3}
v_lshlrev_b32 v8, 4, v0
""")
    spin(C_S2, 4, "s2")
    loads = [f"buffer_load_dwordx4 v[{64+4*i}:{67+4*i}], v8, s[44:47], s10 offen offset:{1024*i} sc1" for i in range(4)]
    poll(loads, [65+2*i for i in range(8)], "y", first_sleep=ysleep)
    stamp_at(12)
    a(f"""
v_add_f32 v16, v64, v68
v_add_f32 v17, v66, v70
v_add_f32 v18, v72, v76
v_add_f32 v19, v74, v78
v_add_f32 v16, v16, v18
v_add_f32 v17, v17, v19
s_nop 1
v_add_f32_dpp v16, v16, v16 row_ror:4 row_mask:0xf bank_mask:0xf
v_add_f32_dpp v17, v17, v17 row_ror:4 row_mask:0xf bank_mask:0xf
s_nop 1
v_add_f32_dpp v16, v16, v16 row_ror:8 row_mask:0xf bank_mask:0xf
v_add_f32_dpp v17, v17, v17 row_ror:8 row_mask:0xf bank_mask:0xf
v_mov_b32 v18, v16
v_mov_b32 v19, v17
s_nop 1
v_permlane16_swap_b32 v16, v18
v_permlane16_swap_b32 v17, v19
v_add_f32 v16, v16, v18
v_add_f32 v17, v17, v19
v_mov_b32 v18, v16
v_mov_b32 v19, v17
s_nop 1
v_permlane32_swap_b32 v16, v18
v_permlane32_swap_b32 v17, v19
v_add_f32 v16, v16, v18
v_add_f32 v17, v17, v19
s_mov_b32 s48, s36
s_mov_b32 s49, s37
s_mov_b32 s50, 4096
v_cvt_pk_bf16_f32 v16, v16, v17
v_lshlrev_b32 v8, 2, v0
s_lshl_b32 s10, s2, 4
s_mov_b64 exec, 15
buffer_store_dword v16, v8, s[48:51], s10 offen
s_cmp_lg_u32 s2, 0
s_cbranch_scc1 L_FIN
s_mov_b64 exec, 1
v_add_u32 v5, 1, v5
buffer_store_dword v5, v4, s[44:47], 0 offen sc1
s_branch L_FIN
""")
    a.label("L_GB")
    a(f"""
s_sub_u32 s9, s3, 4
s_lshl_b32 s10, s6, 3
s_add_u32 s10, s10, s4
s_lshl_b32 s10, s10, 21
s_lshl_b32 s11, s7, 16
s_add_u32 s13, s10, s11
s_add_u32 s13, s13, {6144*256}
s_mov_b32 s50, 65536
s_mov_b32 s54, 65536
s_mul_i32 s10, s2, {rot}
s_add_u32 s10, s10, s9
s_and_b32 s10, s10, 63
s_and_b32 s11, s10, 3
s_lshl_b32 s11, s11, 2
v_add_u32 v6, s11, v2
v_xor_b32 v6, v6, v1
v_lshlrev_b32 v6, 4, v6
v_lshl_add_u32 v6, v2, 8, v6
s_and_b32 s11, s10, 1
s_lshl_b32 s11, s11, 2
v_add_u32 v7, s11, v2
v_lshlrev_b32 v7, 1, v7
v_xor_b32 v7, v7, v1
v_lshlrev_b32 v7, 4, v7
v_lshl_add_u32 v7, v2, 8, v7
v_mov_b32 v8, 0
v_mov_b32 v9, 0
v_mov_b32 v10, 0
v_mov_b32 v11, 0
ds_write_b128 v62, v[8:11]
ds_write_b128 v62, v[8:11] offset:16
v_mov_b32 v60, {C_QK}
s_mov_b32 s12, 16
s_waitcnt lgkmcnt(0)
""")
    stamp_at(14)
    a(f"""
s_add_u32 s48, s18, s13
s_addc_u32 s49, s19, 0
s_add_u32 s52, s20, s13
s_addc_u32 s53, s21, 0
s_mov_b32 s44, s40
s_mov_b32 s45, s41
{"s_barrier" if pre == 0 else ""}
L_KL:
s_lshl_b32 s11, s10, 10
s_mov_b32 m0, s11
s_add_u32 s10, s10, 4
s_and_b32 s10, s10, 63
s_waitcnt vmcnt({depth-1})
buffer_load_dwordx4 v6, s[48:51], s11 offen{NT} lds
s_sub_u32 s12, s12, 1
{"" if pre == 0 else f"s_cmp_lg_u32 s12, {16-pre}" + chr(10) + "s_cbranch_scc1 L_KL2" + chr(10) + "s_barrier" + chr(10) + "L_KL2:"}
s_cmp_lg_u32 s12, 0
s_cbranch_scc1 L_KL
s_and_b32 s10, s10, 31
s_mov_b32 s13, 0
""")
    stamp_at(2)
    a(f"""
L_VH:
s_mov_b32 s12, 8
L_VL:
s_lshl_b32 s11, s10, 10
s_add_u32 s11, s11, s13
s_add_u32 m0, s11, {LV}
s_add_u32 s10, s10, 4
s_and_b32 s10, s10, 31
s_waitcnt vmcnt({depth-1})
s_cmp_lg_u32 s12, {8-(depth-1)}
s_cbranch_scc1 L_VL2
s_mov_b64 exec, 1
ds_add_u32 v60, v63
s_mov_b64 exec, -1
L_VL2:
buffer_load_dwordx4 v7, s[52:55], s11 offen{NT} lds
s_sub_u32 s12, s12, 1
s_cmp_lg_u32 s12, 0
s_cbranch_scc1 L_VL
s_cmp_lg_u32 s13, 0
s_cbranch_scc1 L_VDONE
s_mov_b32 s13, 32768
v_mov_b32 v60, {C_VA}
""")
    spin(C_P1, 4, "p1")
    a("s_branch L_VH")
    a.label("L_VDONE")
    stamp_at(3)
    a(f"""
s_lshl_b32 s10, s4, 2
s_add_u32 s10, s10, s6
s_lshl_b32 s14, s10, 1
s_bfe_u32 s11, s5, 0x10002
s_add_u32 s14, s14, s11
s_and_b32 s11, s5, 3
s_lshl_b32 s11, s11, 8
s_lshl_b32 s12, s14, 16
s_add_u32 s12, s12, s11
s_add_u32 s48, s24, s12
s_addc_u32 s49, s25, 0
s_sub_u32 s50, 4194304, s12
s_mul_i32 s12, s14, {28*1024}
s_add_u32 s12, s12, s11
s_add_u32 s52, s32, s12
s_addc_u32 s53, s33, 0
s_sub_u32 s54, 1835008, s12
v_lshlrev_b32 v6, 1, v2
v_xor_b32 v6, v6, v1
v_lshlrev_b32 v6, 4, v6
v_lshl_add_u32 v6, v2, 10, v6
v_xor_b32 v7, 0x80, v6
s_lshl_b32 s10, s9, 14
s_lshl_b32 s11, s9, 12
s_add_u32 s11, s11, {W3}
""")
    k = 0
    def w3step(srd, vreg, soff_line, m0_line):
        nonlocal k
        a(m0_line); a(soff_line)
        a(f"s_waitcnt vmcnt({depth-1})")
        if k == depth-1: signal(C_VB, wait_lds=False)
        a(f"buffer_load_dwordx4 v{vreg}, {srd}, s12 offen{NT} lds")
        k += 1
    for ii in range(4):
        w3step("s[48:51]", 6+(ii&1), f"s_add_u32 s12, s10, {ii*4096}", f"s_add_u32 m0, s11, {ii*1024}")
    a(f"""
s_lshl_b32 s10, s9, 13
s_lshl_b32 s11, s9, 11
s_add_u32 s11, s11, {W3+16384}
""")
    for ii in range(2):
        w3step("s[52:55]", 6+(ii&1), f"s_add_u32 s12, s10, {ii*4096}\ns_min_u32 s12, s12, {6*4096}", f"s_add_u32 m0, s11, {ii*1024}")
    if depth-1 >= 6:
        a("s_waitcnt vmcnt(6)"); signal(C_VB, wait_lds=False)
    stamp_at(4)
    a.label("L_GBEND")
    a("s_waitcnt vmcnt(0)")
    signal(C_X, wait_lds=False)
    stamp_at(10)
    a.label("L_FIN")
    a("s_mov_b64 exec, -1")
    if stamps:
        stamp_at(13)
        a(f"""
s_waitcnt lgkmcnt(0) vmcnt(0)
s_mov_b32 s46, {WS_STAMP+256*8*64}
s_lshl_b32 s10, s2, 3
s_add_u32 s10, s10, s3
s_lshl_b32 s10, s10, 6
s_add_u32 s10, s10, {WS_STAMP}
v_mov_b32 v4, 0
s_mov_b64 exec, 1
""")
        for i in range(15):
            a(f"v_mov_b32 v6, s{64+2*i}")
            a(f"buffer_store_dword v6, v4, s[44:47], s10 offen offset:{4*i}")
        a("s_getreg_b32 s11, hwreg(HW_REG_XCC_ID)")
        a("v_mov_b32 v6, s11")
        a(f"buffer_store_dword v6, v4, s[44:47], s10 offen offset:{4*15}")
    a("L_end:")
    a("s_endpgm")
    return a.text()

HEADER = open("gated_mix__sliding_block_cached__glu_gated_swiglu__decode.s.ref").read().split("; Override launch geometry")[0]

def full(**kw):
    return wrap(gen(**kw), 256, 512, 163840, vgpr=160, sgpr=102, header=HEADER)

if __name__ == "__main__":
    open("k5.s", "w").write(full())
    open("k5_diag.s", "w").write(full(stamps=True))
    for nm, kw in {"cpf": dict(cpf=True), "nont": dict(nt=False), "d8": dict(depth=8), "cpf_d8": dict(cpf=True, depth=8)}.items():
        open(f"../cdna_kernels/k5_{nm}.s", "w").write(full(**kw))
```

```python
import sys
from gen_common import *

WS_P1  = 0x1000
WS_P2L = 0x82000
WS_P2  = 0x90000
WS_P3  = 0x110000
WS_END = 0x210000
WS_STAMP = 0x300000
AOFF = 0x400000
LK, LV, LVB, LC = 0, 65536, 98304, 131072
W3 = LC
S0 = LC + 24576
C_P1, C_QK, C_VA, C_VB, C_P, C_X, C_S, C_S2 = [S0 + 4*i for i in range(8)]
C_FIN = S0 + 48
GG, ML, QQ, XO, XH, PP = S0+32, S0+128, S0+512, S0+6656, S0+7168, S0+2560
PART = S0 + 1536
HASH = 0x9E3779B1
SCALE_LOG2E = 0.08838834764831845 * 1.4426950408889634
LOG2E = 1.4426950408889634

def f32hex(x):
    import struct
    return "0x%08x" % struct.unpack("<I", struct.pack("<f", x))[0]

def gen(stamps=False, nt=True, dK=6, dV=8, rot=5, poll_limit=20000, pre=1, spin_sleep=1,
        qsleep=2, qslp=1, oslp=1, yslp=1, hslp=4, ypipe=False, yper=2, dbg=None, bper=16, cleanup=False, pfq=False, pfo=False, stw=False, exp=None, dW=None):
    a = Asm()
    NT = " nt" if nt else ""
    def stamp_at(i):
        if stamps:
            a(f"s_memrealtime s[{64+2*i}:{65+2*i}]")
    def exec_n4():
        a("s_mov_b32 exec_lo, 0x000F000F\ns_mov_b32 exec_hi, 0x000F000F")
    def exec_h0():
        a("s_mov_b32 exec_lo, 0x11111111\ns_mov_b32 exec_hi, 0x11111111")
    def exec_all():
        a("s_mov_b64 exec, -1")
    def poll(loads, tags, name, first_sleep=0, mask=None, preissued=False, slp=1, dual=False, lateB=None, R=8, pre_vm=0, cond=None):
        L = a.newlabel("Lpoll_"+name); D = a.newlabel("Ldone_"+name); C = a.newlabel("Lchk_"+name); C2 = a.newlabel("Lchk2_"+name)
        N1 = a.newlabel("Lnb_"+name); N2 = a.newlabel("Lnb_"+name)
        lim = poll_limit - (poll_limit % bper) + bper - 1
        a(f"s_mov_b32 s62, {lim}")
        if first_sleep: a(f"s_sleep {first_sleep}")
        if mask: a(mask)
        if preissued:
            a(f"s_waitcnt vmcnt({pre_vm})")
            a(f"s_branch {C2}")
        a.label(L)
        if lateB:
            a(f"s_cmp_lg_u32 s62, {lim-R}")
            a(f"s_cbranch_scc1 {N1}")
            if cond:
                a(f"s_cmp_eq_u32 {cond}, 0")
                a(f"s_cbranch_scc1 {N1}")
            a("s_mov_b64 s[60:61], exec")
            a("s_mov_b64 exec, -1")
            a(lateB)
            a("s_mov_b64 exec, s[60:61]")
            a.label(N1)
        if dual:
            a(f"s_and_b32 s63, s62, {bper-1}")
            a("s_cselect_b32 s56, s98, s40")
            a("s_cselect_b32 s57, s99, s41")
        for ln in loads: a(ln)
        a.label(C)
        a("s_waitcnt vmcnt(0)")
        a.label(C2)
        for i, t in enumerate(tags):
            if i == 0: a(f"v_cmp_ne_u32 vcc, s8, v{t}")
            else:
                a(f"v_cmp_ne_u32 s[60:61], s8, v{t}")
                a("s_or_b64 vcc, vcc, s[60:61]")
        a("s_mov_b64 exec, vcc")
        a(f"s_cbranch_execz {D}")
        a("s_sub_u32 s62, s62, 1")
        a(f"s_cbranch_scc1 {D}")
        if slp: a(f"s_sleep {slp}")
        a(f"s_branch {L}")
        a.label(D)
        a("s_mov_b64 exec, -1")
        if lateB:
            a(f"s_cmp_lt_u32 s62, {lim-R}")
            a(f"s_cbranch_scc1 {N2}")
            a(f"s_cmp_eq_u32 s62, {lim-R}")
            a(f"s_cbranch_scc1 {N2}")
            if cond:
                a(f"s_cmp_eq_u32 {cond}, 0")
                a(f"s_cbranch_scc1 {N2}")
            a(lateB)
            a("s_mov_b64 exec, -1")
            a.label(N2)
    def tag_from_v5():
        a(f"v_readfirstlane_b32 s8, v5\ns_add_u32 s8, s8, 1\ns_mul_i32 s8, s8, {HASH:#x}")
    def signal(cnt, wait_lds=True):
        if wait_lds: a("s_waitcnt lgkmcnt(0)")
        a("s_mov_b64 exec, 1")
        a(f"ds_add_u32 v62, v63 offset:{cnt-S0}")
        a("s_mov_b64 exec, -1")
    def spin(cnt, target, name):
        L = a.newlabel("Lspin_"+name); D = a.newlabel("Lsd_"+name)
        a(f"s_mov_b32 s62, {poll_limit*8}")
        a.label(L)
        a(f"ds_read_b32 v61, v62 offset:{cnt-S0}")
        a("s_waitcnt lgkmcnt(0)")
        a("v_readfirstlane_b32 s63, v61")
        a(f"s_cmp_ge_u32 s63, {target}")
        a(f"s_cbranch_scc1 {D}")
        a("s_sub_u32 s62, s62, 1")
        a(f"s_cbranch_scc1 {D}")
        if spin_sleep: a(f"s_sleep {spin_sleep}")
        a(f"s_branch {L}")
        a.label(D)

    a(f"""
s_cmp_ge_u32 s2, 256
s_cbranch_scc1 L_end
""")
    stamp_at(0)
    a(f"""
s_load_dwordx16 s[16:31], s[0:1], 0
s_load_dwordx8 s[32:39], s[0:1], 64
s_load_dwordx2 s[40:41], s[0:1], 96
v_lshrrev_b32 v1, 6, v0
v_and_b32 v0, 63, v0
v_readfirstlane_b32 s3, v1
v_and_b32 v1, 15, v0
v_lshrrev_b32 v2, 4, v0
v_and_b32 v3, 3, v0
v_lshrrev_b32 v58, 2, v1
v_lshlrev_b32 v172, 4, v0
s_and_b32 s4, s2, 7
s_lshr_b32 s5, s2, 3
s_lshr_b32 s6, s5, 3
s_and_b32 s7, s5, 7
v_mov_b32 v4, 0
v_mov_b32 v62, {S0}
v_mov_b32 v63, 1
s_lshl_b32 s9, s4, 4
s_add_u32 s9, s9, s5
s_mul_i32 s10, s4, 14
s_add_u32 s10, s10, s5
s_add_u32 s10, s10, 112
s_cmp_ge_u32 s5, 16
s_cselect_b32 s9, s10, s9
s_lshl_b32 s10, s4, 1
s_add_u32 s10, s10, s5
s_add_u32 s10, s10, 210
s_cmp_ge_u32 s5, 30
s_cselect_b32 s9, s10, s9
s_mov_b32 s46, {WS_END + AOFF}
s_mov_b32 s47, 0x00020000
s_mov_b32 s51, 0x00020000
s_mov_b32 s55, 0x00020000
s_mov_b32 s59, 0x00020000
s_cmp_ge_u32 s3, 4
s_cbranch_scc1 L_GB
; ================= group A =================
s_movk_i32 s12, 8192
s_movk_i32 s13, 3584
s_mov_b32 s14, 4194304
s_mov_b32 s15, 1835008
s_cmp_ge_u32 s9, 128
s_cselect_b32 s12, s13, s12
s_cselect_b32 s14, s15, s14
s_cselect_b32 s10, 128, 0
s_cmp_ge_u32 s9, 184
s_cselect_b32 s10, 184, s10
s_sub_u32 s10, s9, s10
s_and_b32 s11, s10, 1
s_lshr_b32 s10, s10, 1
s_lshl_b32 s10, s10, 7
s_lshl_b32 s13, s12, 8
s_mul_i32 s13, s13, s11
s_add_u32 s10, s10, s13
s_sub_u32 s50, s14, s10
s_cmp_ge_u32 s9, 240
s_cselect_b32 s50, 0, s50
v_lshrrev_b32 v6, 3, v0
v_mul_lo_u32 v6, v6, s12
v_and_b32 v8, 7, v0
v_bfe_u32 v9, v0, 4, 1
v_lshlrev_b32 v9, 1, v9
v_xor_b32 v8, v8, v9
v_lshl_add_u32 v6, v8, 4, v6
v_xor_b32 v7, 64, v6
s_lshl_b32 s15, s12, 6
s_mul_i32 s15, s15, s3
s_lshl_b32 s13, s12, 3
s_lshl_b32 s14, s3, 13
s_add_u32 s14, s14, {LVB}
s_mov_b32 m0, s14
s_add_u32 s14, s14, 8192
v_lshlrev_b32 v8, 10, v3
v_lshl_add_u32 v8, v2, 4, v8
v_lshlrev_b32 v9, 4, v2
s_lshl_b32 s60, s11, 9
s_lshl_b32 s61, s3, 7
s_add_u32 s60, s60, s61
s_lshl_b32 s61, s3, 8
s_mov_b32 s54, 4096
s_mov_b32 s58, 1024
s_waitcnt lgkmcnt(0)
""")
    stamp_at(14)
    a(f"""
s_mov_b32 s44, s40
s_mov_b32 s45, s41
s_mov_b32 s52, s16
s_mov_b32 s53, s17
s_mov_b32 s56, s34
s_mov_b32 s57, s35
buffer_load_dword v5, v4, s[44:47], 0 offen sc1
""")
    if pfq:
        a(f"""
v_lshrrev_b32 v176, 5, v0
v_lshlrev_b32 v176, 12, v176
v_and_b32 v177, 31, v0
v_lshl_add_u32 v176, v177, 4, v176
s_lshl_b32 s62, s4, 4
s_lshl_b32 s63, s3, 2
s_add_u32 s62, s62, s63
s_lshl_b32 s62, s62, 11
s_lshl_b32 s63, s6, 9
s_add_u32 s62, s62, s63
s_add_u32 s62, s62, {WS_P1 + AOFF}
buffer_load_dwordx4 v[180:183], v176, s[44:47], s62 offen sc1
buffer_load_dwordx4 v[184:187], v176, s[44:47], s62 offen offset:2048 sc1
""")
    exec_n4()
    for s in range(2):
        a(f"buffer_load_dwordx4 v[{64+4*s}:{67+4*s}], v8, s[52:55], s60 offen offset:{64*s}")
    for s in range(4):
        a(f"buffer_load_dwordx4 v[{72+4*s}:{75+4*s}], v8, s[52:55], s61 offen offset:{64*s}")
    a("s_mov_b32 exec_lo, 0x00010001\ns_mov_b32 exec_hi, 0x00010001")
    for s in range(4):
        a(f"buffer_load_dwordx4 v[{88+4*s}:{91+4*s}], v9, s[56:59], s61 offen offset:{64*s}")
    exec_all()
    a(f"""
s_cmp_ge_u32 s9, 128
s_cselect_b32 s48, s28, s22
s_cselect_b32 s49, s29, s23
s_cmp_ge_u32 s9, 184
s_cselect_b32 s48, s30, s48
s_cselect_b32 s49, s31, s49
s_add_u32 s48, s48, s10
s_addc_u32 s49, s49, 0
{'s_barrier' + chr(10) + 's_branch L_FIN' if exp == 'noA_noW1' else ''}
L_W1:
buffer_load_dwordx4 v6, s[48:51], s15 offen{NT} lds
s_add_u32 s15, s15, s13
s_add_u32 m0, m0, 1024
s_nop 0
buffer_load_dwordx4 v7, s[48:51], s15 offen{NT} lds
s_add_u32 s15, s15, s13
s_add_u32 m0, m0, 1024
s_cmp_lt_u32 m0, s14
s_cbranch_scc1 L_W1
s_barrier
""")
    stamp_at(1)
    if exp in ("noA", "noA_noW1"):
        a("s_waitcnt vmcnt(0)")
        stamp_at(2)
        a("s_branch L_FIN")
    a(f"""
v_lshl_add_u32 v9, v2, 3, v58
v_lshlrev_b32 v9, 7, v9
v_bfe_u32 v10, v1, 3, 1
v_and_b32 v11, 1, v2
v_lshl_add_u32 v10, v11, 1, v10
v_lshl_add_u32 v9, v10, 5, v9
v_lshl_add_u32 v9, v3, 3, v9
s_lshl_b32 s14, s3, 13
s_add_u32 s14, s14, {LVB}
v_add_u32 v10, s14, v9
v_xor_b32 v11, 32, v10
v_xor_b32 v12, 64, v10
v_xor_b32 v13, 96, v10
v_lshlrev_b32 v8, 6, v2
v_lshl_add_u32 v8, v1, 4, v8
s_mul_i32 s10, s3, 1280
s_add_u32 s10, s10, {PART}
v_add_u32 v8, s10, v8
v_mov_b32 v9, {C_P1}
s_add_u32 s98, s40, {AOFF}
s_addc_u32 s99, s41, 0
s_mov_b32 s52, s98
s_mov_b32 s53, s99
s_mov_b32 s54, {WS_END}
s_mov_b32 s58, {WS_END}
s_mov_b32 s101, 0
s_mov_b32 s100, 0
s_waitcnt vmcnt(0)
""")
    stamp_at(2)
    for s in range(2):
        for ct in range(4):
            for hf in range(2):
                r = 104 + (s*4+ct)*4 + 2*hf
                a(f"ds_read_b64_tr_b16 v[{r}:{r+1}], v{10+ct} offset:{s*4096+hf*512}")
    for s in range(4):
        c = "0" if s == 0 else "v[32:35]"
        a(f"v_mfma_f32_16x16x32_bf16 v[32:35], v[{88+4*s}:{91+4*s}], v[{72+4*s}:{75+4*s}], {c}")
    tag_from_v5()
    for s in range(2):
        for ct in range(4):
            c = "0" if s == 0 else f"v[{16+4*ct}:{19+4*ct}]"
            r = 104 + (s*4+ct)*4
            if ct == 0: a(f"s_waitcnt lgkmcnt({8 if s == 0 else 0})")
            a(f"v_mfma_f32_16x16x32_bf16 v[{16+4*ct}:{19+4*ct}], v[{r}:{r+3}], v[{64+4*s}:{67+4*s}], {c}")
    a("s_nop 5")
    exec_n4()
    for t in range(5):
        a(f"ds_write_b128 v8, v[{16+4*t}:{19+4*t}] offset:{256*t}")
    a(f"""
s_mov_b64 exec, 1
s_waitcnt lgkmcnt(0)
ds_add_rtn_u32 v11, v9, v63
s_mov_b64 exec, -1
v_bfe_u32 v8, v0, 3, 2
v_lshlrev_b32 v8, 8, v8
v_bfe_u32 v10, v0, 1, 2
v_lshl_add_u32 v8, v10, 6, v8
v_lshrrev_b32 v10, 5, v0
v_lshl_add_u32 v8, v10, 4, v8
v_and_b32 v10, 1, v0
v_lshl_add_u32 v8, v10, 3, v8
v_add_u32 v8, {PART}, v8
v_lshlrev_b32 v9, 4, v3
v_add_u32 v9, {PART+1024}, v9
s_waitcnt lgkmcnt(0)
v_readfirstlane_b32 s10, v11
s_cmp_lg_u32 s10, 3
s_cbranch_scc1 L_QP
""")
    for k in range(2):
        for w in range(4):
            r = 16 + (k*4+w)*2
            a(f"ds_read_b64 v[{r}:{r+1}], v8 offset:{1280*w+32*k}")
    for w in range(4):
        a(f"ds_read_b32 v{32+w}, v9 offset:{1280*w}")
    a(f"""
s_lshl_b32 s100, s9, 11
s_add_u32 s100, s100, {WS_P1}
v_mov_b32 v165, s8
v_mov_b32 v167, s8
v_mov_b32 v169, s8
v_mov_b32 v171, s8
s_waitcnt lgkmcnt(4)
v_add_f32 v16, v16, v18
v_add_f32 v17, v17, v19
v_add_f32 v20, v20, v22
v_add_f32 v21, v21, v23
v_add_f32 v24, v24, v26
v_add_f32 v25, v25, v27
v_add_f32 v28, v28, v30
v_add_f32 v29, v29, v31
v_add_f32 v164, v16, v20
v_add_f32 v166, v17, v21
v_add_f32 v168, v24, v28
v_add_f32 v170, v25, v29
s_cmp_ge_u32 s9, 128
s_cbranch_scc1 L_NOA1
s_mov_b32 s101, 1
buffer_store_dwordx4 v[164:167], v172, s[52:55], s100 offen
buffer_store_dwordx4 v[168:171], v172, s[52:55], s100 offen offset:1024
s_branch L_NOA2
L_NOA1:
buffer_store_dwordx4 v[164:167], v172, s[44:47], s100 offen sc1
buffer_store_dwordx4 v[168:171], v172, s[44:47], s100 offen offset:1024 sc1
L_NOA2:
s_waitcnt lgkmcnt(0)
v_add_f32 v32, v32, v33
v_add_f32 v34, v34, v35
v_add_f32 v32, v32, v34
v_mul_f32 v32, {f32hex(-LOG2E)}, v32
v_exp_f32 v32, v32
v_lshlrev_b32 v9, 2, v0
v_add_f32 v32, 1.0, v32
v_rcp_f32 v32, v32
v_add_u32 v9, {GG}, v9
s_mov_b64 exec, 15
ds_write_b32 v9, v32
s_mov_b64 exec, -1
L_QP:
""")
    stamp_at(3)
    a(f"""
v_lshrrev_b32 v9, 5, v0
v_lshlrev_b32 v9, 12, v9
v_and_b32 v10, 31, v0
v_lshl_add_u32 v9, v10, 4, v9
s_lshl_b32 s10, s4, 4
s_lshl_b32 s11, s3, 2
s_add_u32 s10, s10, s11
s_lshl_b32 s10, s10, 11
s_lshl_b32 s11, s6, 9
s_add_u32 s10, s10, s11
s_add_u32 s10, s10, {WS_P1}
""")
    poll(["buffer_load_dwordx4 v[24:27], v9, s[56:59], s10 offen sc1",
          "buffer_load_dwordx4 v[28:31], v9, s[56:59], s10 offen offset:2048 sc1"], [25, 27, 29, 31], "q", first_sleep=qsleep, slp=qslp, dual=True, cond="s101", R=3, lateB="buffer_store_dwordx4 v[164:167], v172, s[44:47], s100 offen sc1\nbuffer_store_dwordx4 v[168:171], v172, s[44:47], s100 offen offset:1024 sc1")
    a(f"""
s_lshl_b32 s10, s3, 8
s_add_u32 s10, s10, {QQ}
v_add_f32 v24, v24, v28
v_add_f32 v26, v26, v30
v_lshlrev_b32 v9, 2, v0
v_add_u32 v9, s10, v9
v_cvt_pk_bf16_f32 v24, v24, v26
ds_write_b32 v9, v24
""")
    signal(C_QK)
    stamp_at(4)
    a(f"""
v_xor_b32 v8, v2, v1
s_lshl_b32 s10, s3, 14
v_lshl_add_u32 v9, v1, 8, s10
v_lshl_add_u32 v10, v8, 4, v9
v_xor_b32 v11, 64, v10
v_xor_b32 v12, 128, v10
v_xor_b32 v13, 192, v10
v_lshlrev_b32 v14, 8, v58
v_lshl_add_u32 v14, v2, 4, v14
v_add_u32 v14, {QQ}, v14
s_mov_b32 s12, {f32hex(SCALE_LOG2E)}
v_lshlrev_b32 v36, 6, v2
v_lshl_add_u32 v36, v58, 4, v36
s_lshl_b32 s11, s3, 9
s_add_u32 s11, s11, {PP}
v_add_u32 v37, s11, v36
v_lshlrev_b32 v38, 5, v58
s_lshl_b32 s11, s3, 2
s_add_u32 s11, s11, {ML}
v_add_u32 v39, s11, v38
""")
    spin(C_QK, 8, "qk")
    stamp_at(5)
    for j in range(4):
        a(f"ds_read_b128 v[{64+4*j}:{67+4*j}], v14 offset:{64*j}")
    for tt in range(4):
        for j in range(4):
            r = 80+(tt*4+j)*4
            a(f"ds_read_b128 v[{r}:{r+3}], v{10+j} offset:{tt*4096}")
    for tt in range(4):
        a(f"s_waitcnt lgkmcnt({12-4*tt})")
        for j in range(4):
            r = 80+(tt*4+j)*4
            c = "0" if j == 0 else f"v[{16+4*tt}:{19+4*tt}]"
            a(f"v_mfma_f32_16x16x32_bf16 v[{16+4*tt}:{19+4*tt}], v[{r}:{r+3}], v[{64+4*j}:{67+4*j}], {c}")
    a(f"""
v_max3_f32 v32, v16, v17, v18
v_max3_f32 v33, v19, v20, v21
v_max3_f32 v32, v32, v22, v23
s_nop 0
v_max3_f32 v33, v33, v24, v25
v_max3_f32 v32, v32, v26, v27
s_nop 2
v_max3_f32 v33, v33, v28, v29
v_max3_f32 v32, v32, v30, v31
v_max_f32 v32, v32, v33
v_mov_b32 v33, v32
s_nop 1
v_permlane32_swap_b32 v32, v33
v_max_f32 v32, v32, v33
v_mov_b32 v33, v32
s_nop 1
v_permlane16_swap_b32 v32, v33
v_max_f32 v32, v32, v33
v_mul_f32 v32, s12, v32
""")
    for i in range(16):
        a(f"v_fma_f32 v{16+i}, v{16+i}, s12, -v32")
    for i in range(16):
        a(f"v_exp_f32 v{16+i}, v{16+i}")
    for i in range(8):
        a(f"v_cvt_pk_bf16_f32 v{40+i}, v{16+2*i}, v{17+2*i}")
    for i in range(8):
        a(f"v_add_f32 v{16+2*i}, v{16+2*i}, v{17+2*i}")
    a(f"""
v_add_f32 v16, v16, v18
v_add_f32 v20, v20, v22
v_add_f32 v24, v24, v26
v_add_f32 v28, v28, v30
v_add_f32 v16, v16, v20
v_add_f32 v24, v24, v28
v_add_f32 v33, v16, v24
v_mov_b32 v34, v33
""")
    exec_h0()
    a("ds_write_b128 v37, v[40:43]")
    a("ds_write_b128 v37, v[44:47] offset:256")
    exec_all()
    a(f"""
v_permlane32_swap_b32 v33, v34
v_add_f32 v33, v33, v34
v_mov_b32 v34, v33
s_nop 1
v_permlane16_swap_b32 v33, v34
v_add_f32 v33, v33, v34
s_mov_b64 exec, 0x1111
ds_write_b32 v39, v32
ds_write_b32 v39, v33 offset:16
s_mov_b64 exec, -1
""")
    signal(C_P)
    stamp_at(6)
    HL = ["buffer_load_dwordx4 v[144:147], v59, s[44:47], s96 offen sc1",
          "buffer_load_dwordx4 v[148:151], v59, s[44:47], s96 offen offset:2048 sc1",
          "buffer_load_dwordx4 v[152:155], v59, s[44:47], s97 offen sc1",
          "buffer_load_dwordx4 v[156:159], v59, s[44:47], s97 offen offset:2048 sc1"]
    a(f"""
s_lshl_b32 s13, s4, 2
s_add_u32 s13, s13, s6
s_lshl_b32 s14, s13, 1
s_bfe_u32 s15, s5, 0x10002
s_add_u32 s14, s14, s15
v_min_u32 v8, 13, v1
s_mul_i32 s10, s14, 28
v_lshl_add_u32 v9, v8, 1, s10
v_lshrrev_b32 v59, 6, v9
v_lshlrev_b32 v59, 12, v59
v_and_b32 v11, 63, v9
v_lshl_add_u32 v59, v11, 3, v59
s_lshl_b32 s10, s3, 9
s_add_u32 s96, s10, {WS_P1+128*2048}
s_add_u32 s97, s10, {WS_P1+184*2048}
s_mov_b64 exec, 0xffff
""")
    for ln in HL: a(ln)
    exec_all()
    if pfo:
        a(f"""
s_lshl_b32 s10, s13, 2
s_add_u32 s10, s10, s3
s_lshl_b32 s11, s10, 12
s_lshl_b32 s12, s15, 8
s_add_u32 s11, s11, s12
s_add_u32 s11, s11, {WS_P2 + AOFF}
s_lshl_b32 s12, s10, 6
s_add_u32 s12, s12, {WS_P2L + AOFF}
v_lshlrev_b32 v176, 4, v1
v_lshl_add_u32 v176, v2, 10, v176
v_lshlrev_b32 v177, 4, v2
buffer_load_dwordx4 v[180:183], v176, s[44:47], s11 offen sc1
buffer_load_dwordx4 v[184:187], v176, s[44:47], s11 offen offset:512 sc1
buffer_load_dwordx4 v[188:191], v177, s[44:47], s12 offen sc1
""")
    a(f"""
v_add_u32 v36, {PP}, v36
v_lshlrev_b32 v38, 5, v2
v_add_u32 v38, {ML}, v38
v_lshl_add_u32 v9, v2, 2, v58
v_and_b32 v10, 7, v9
v_lshlrev_b32 v10, 1, v10
v_lshrrev_b32 v11, 1, v3
s_lshl_b32 s10, s3, 2
v_add_u32 v11, s10, v11
v_xor_b32 v10, v10, v11
v_lshlrev_b32 v10, 4, v10
v_lshl_add_u32 v10, v9, 8, v10
v_and_b32 v11, 1, v3
v_lshl_add_u32 v10, v11, 3, v10
v_add_u32 v12, {LV}, v10
v_xor_b32 v13, 32, v12
v_add_u32 v6, {W3}, v10
v_xor_b32 v7, 32, v6
s_lshl_b32 s10, s4, 4
s_add_u32 s10, s10, s6
s_lshl_b32 s10, s10, 3
s_add_u32 s10, s10, s7
v_lshlrev_b32 v160, 14, v2
v_and_b32 v15, 1, v1
v_lshl_add_u32 v160, v15, 6, v160
v_lshrrev_b32 v15, 1, v1
v_lshl_add_u32 v160, v15, 3, v160
s_lshl_b32 s94, s10, 9
s_lshl_b32 s12, s3, 7
s_add_u32 s94, s94, s12
s_add_u32 s94, s94, {WS_P2}
v_lshlrev_b32 v161, 8, v2
s_lshl_b32 s95, s10, 3
s_add_u32 s95, s95, {WS_P2L}
s_mov_b32 s42, 0xAAAAAAAA
s_mov_b32 s43, 0xAAAAAAAA
""")
    spin(C_P, 4, "p")
    for s in range(8):
        a(f"ds_read_b128 v[{64+4*s}:{67+4*s}], v36 offset:{256*s}")
    a(f"""
ds_read_b128 v[48:51], v38
ds_read_b128 v[52:55], v38 offset:16
s_waitcnt lgkmcnt(0)
v_max3_f32 v56, v48, v49, v50
v_max_f32 v56, v56, v51
v_sub_f32 v48, v48, v56
v_sub_f32 v49, v49, v56
v_sub_f32 v50, v50, v56
v_sub_f32 v51, v51, v56
v_exp_f32 v48, v48
v_exp_f32 v49, v49
v_exp_f32 v50, v50
v_exp_f32 v51, v51
s_nop 0
v_mul_f32 v57, v48, v52
v_fmac_f32 v57, v49, v53
v_fmac_f32 v57, v50, v54
v_fmac_f32 v57, v51, v55
v_rcp_f32 v55, v57
v_log_f32 v162, v57
v_mov_b32 v163, s8
v_mov_b32 v133, s8
v_mul_f32 v48, v48, v55
v_mul_f32 v49, v49, v55
v_mul_f32 v50, v50, v55
v_mul_f32 v51, v51, v55
v_add_f32 v162, v162, v56
""")
    def pv_stage(st):
        for u in range(2):
            for sl in range(4):
                s = st*4 + sl
                for hf in range(2):
                    r = 96 + (u*4+sl)*4 + 2*hf
                    a(f"ds_read_b64_tr_b16 v[{r}:{r+1}], v{12+u} offset:{s*8192+hf*4096}")
        n = 16
        for u in range(2):
            for sl in range(4):
                s = st*4 + sl
                tq = s >> 1
                r = 96 + (u*4+sl)*4
                acc = 16 + (u*4+tq)*4
                n -= 2
                a(f"s_waitcnt lgkmcnt({n})")
                c = "0" if (s & 1) == 0 else f"v[{acc}:{acc+3}]"
                a(f"v_mfma_f32_16x16x32_bf16 v[{acc}:{acc+3}], v[{64+4*s}:{67+4*s}], v[{r}:{r+3}], {c}")
    spin(C_VA, 4, "va")
    pv_stage(0)
    a("s_nop 7")
    for u in range(2):
        a(f"v_mul_f32 v{128+u}, v48, v{16+(u*4+0)*4}")
    for u in range(2):
        a(f"v_fmac_f32 v{128+u}, v49, v{16+(u*4+1)*4}")
    poll(HL, [145+2*i for i in range(8)], "h", mask="s_mov_b64 exec, 0xffff", preissued=True, slp=hslp, pre_vm=0)
    a(f"""
v_add_f32 v16, v144, v148
v_add_f32 v17, v146, v150
v_add_f32 v18, v152, v156
v_add_f32 v19, v154, v158
v_mul_f32 v20, {f32hex(-LOG2E)}, v16
v_mul_f32 v21, {f32hex(-LOG2E)}, v17
v_exp_f32 v20, v20
v_exp_f32 v21, v21
v_mul_f32 v16, v16, v18
v_add_f32 v20, 1.0, v20
v_add_f32 v21, 1.0, v21
v_rcp_f32 v20, v20
v_rcp_f32 v21, v21
v_mul_f32 v17, v17, v19
v_mul_f32 v16, v16, v20
v_mul_f32 v17, v17, v21
v_cvt_pk_bf16_f32 v16, v16, v17
v_cmp_gt_u32 vcc, 14, v1
v_bfe_u32 v23, v1, 1, 2
v_lshlrev_b32 v22, 4, v23
v_lshrrev_b32 v23, 3, v1
v_lshl_add_u32 v22, v23, 3, v22
v_and_b32 v23, 1, v1
v_lshl_add_u32 v22, v23, 2, v22
s_lshl_b32 s10, s3, 6
s_add_u32 s10, s10, {XH}
v_add_u32 v22, s10, v22
v_cndmask_b32 v16, 0, v16, vcc
s_mov_b64 exec, 0xffff
ds_write_b32 v22, v16
s_mov_b64 exec, -1
""")
    spin(C_VB, 4, "vb")
    stamp_at(7)
    pv_stage(1)
    a(f"""
s_nop 6
v_fmac_f32 v128, v50, v{16+2*4}
v_fmac_f32 v128, v51, v{16+3*4}
v_fmac_f32 v129, v50, v{16+6*4}
v_fmac_f32 v129, v51, v{16+7*4}
s_nop 0
v_mov_b32_dpp v130, v128 quad_perm:[1,0,3,2] row_mask:0xf bank_mask:0xf
s_nop 0
v_mov_b32_dpp v131, v129 quad_perm:[1,0,3,2] row_mask:0xf bank_mask:0xf
v_cvt_pk_bf16_f32 v130, v128, v130
v_cvt_pk_bf16_f32 v131, v131, v129
v_cndmask_b32 v132, v130, v131, s[42:43]
buffer_store_dwordx2 v[132:133], v160, s[52:55], s94 offen
s_mov_b32 exec_lo, 0x00010001
s_mov_b32 exec_hi, 0x00010001
buffer_store_dwordx2 v[162:163], v161, s[52:55], s95 offen
s_mov_b64 exec, -1
""")
    stamp_at(8)
    if stw:
        a('s_waitcnt vmcnt(0)')
        stamp_at(1)
    a(f"""
s_and_b32 s9, s5, 3
s_lshl_b32 s10, s13, 2
s_add_u32 s10, s10, s3
s_lshl_b32 s11, s10, 12
s_lshl_b32 s12, s15, 8
s_add_u32 s11, s11, s12
s_add_u32 s11, s11, {WS_P2}
s_lshl_b32 s12, s10, 6
s_add_u32 s12, s12, {WS_P2L}
v_lshlrev_b32 v10, 4, v1
v_lshl_add_u32 v10, v2, 10, v10
v_lshlrev_b32 v11, 4, v2
v_lshrrev_b32 v22, 3, v1
v_lshlrev_b32 v22, 8, v22
v_lshl_add_u32 v22, v3, 4, v22
v_bfe_u32 v23, v1, 2, 1
v_lshl_add_u32 v22, v23, 3, v22
s_lshl_b32 s10, s3, 6
s_add_u32 s10, s10, {XO}
v_add_u32 v22, s10, v22
""")
    loads = [f"buffer_load_dwordx4 v[{64+4*i}:{67+4*i}], v10, s[56:59], s11 offen offset:{512*i} sc1" for i in range(2)]
    loads += ["buffer_load_dwordx4 v[72:75], v11, s[56:59], s12 offen sc1"]
    tags = [65+2*i for i in range(6)]
    if stamps:
        a("s_cmp_eq_u32 s3, 0\ns_cbranch_scc1 L_nost12\ns_memrealtime s[88:89]\nL_nost12:")
    poll(loads, tags, "o", slp=oslp, dual=True, R=10, lateB="buffer_store_dwordx2 v[132:133], v160, s[44:47], s94 offen sc1\ns_mov_b32 exec_lo, 0x00010001\ns_mov_b32 exec_hi, 0x00010001\nbuffer_store_dwordx2 v[162:163], v161, s[44:47], s95 offen sc1")
    stamp_at(9)
    if stamps:
        a("s_waitcnt lgkmcnt(0)\ns_sub_u32 s92, 20015, s62")
    a(f"""
v_max_f32 v16, v72, v74
v_lshlrev_b32 v40, 16, v64
v_mov_b32 v17, v16
v_and_b32 v41, 0xffff0000, v64
v_lshlrev_b32 v42, 16, v66
v_permlane32_swap_b32 v16, v17
v_and_b32 v43, 0xffff0000, v66
v_max_f32 v16, v16, v17
v_lshlrev_b32 v44, 16, v68
v_mov_b32 v17, v16
v_and_b32 v45, 0xffff0000, v68
v_lshlrev_b32 v46, 16, v70
v_permlane16_swap_b32 v16, v17
v_and_b32 v47, 0xffff0000, v70
v_max_f32 v16, v16, v17
v_sub_f32 v72, v72, v16
v_sub_f32 v74, v74, v16
v_exp_f32 v72, v72
v_exp_f32 v74, v74
s_nop 0
v_mul_f32 v18, v72, v40
v_mul_f32 v19, v72, v41
v_mul_f32 v20, v72, v42
v_mul_f32 v21, v72, v43
v_add_f32 v16, v72, v74
v_fmac_f32 v18, v74, v44
v_fmac_f32 v19, v74, v45
v_fmac_f32 v20, v74, v46
v_fmac_f32 v21, v74, v47
v_mov_b32 v17, v16
v_mov_b32 v24, v18
v_mov_b32 v25, v19
v_mov_b32 v26, v20
v_mov_b32 v27, v21
v_permlane32_swap_b32 v16, v17
v_permlane32_swap_b32 v18, v24
v_permlane32_swap_b32 v19, v25
v_permlane32_swap_b32 v20, v26
v_permlane32_swap_b32 v21, v27
v_add_f32 v16, v16, v17
v_add_f32 v18, v18, v24
v_add_f32 v19, v19, v25
v_add_f32 v20, v20, v26
v_add_f32 v21, v21, v27
v_mov_b32 v17, v16
v_mov_b32 v24, v18
v_mov_b32 v25, v19
v_mov_b32 v26, v20
v_mov_b32 v27, v21
v_permlane16_swap_b32 v16, v17
v_permlane16_swap_b32 v18, v24
v_permlane16_swap_b32 v19, v25
v_permlane16_swap_b32 v20, v26
v_permlane16_swap_b32 v21, v27
v_add_f32 v16, v16, v17
v_add_f32 v18, v18, v24
v_rcp_f32 v16, v16
v_add_f32 v19, v19, v25
v_add_f32 v20, v20, v26
v_add_f32 v21, v21, v27
v_mul_f32 v18, v18, v16
v_mul_f32 v19, v19, v16
v_mul_f32 v20, v20, v16
v_mul_f32 v21, v21, v16
v_cvt_pk_bf16_f32 v18, v18, v19
v_cvt_pk_bf16_f32 v19, v20, v21
ds_write_b64 v22, v[18:19]
""")
    a(f"""
v_lshlrev_b32 v8, 6, v58
v_lshl_add_u32 v8, v2, 4, v8
v_add_u32 v9, {XO}, v8
v_lshlrev_b32 v10, 2, v2
v_add_u32 v10, {GG}, v10
v_lshlrev_b32 v14, 18, v2
v_lshrrev_b32 v15, 3, v1
v_lshl_add_u32 v14, v15, 12, v14
v_and_b32 v15, 7, v1
v_lshl_add_u32 v14, v15, 3, v14
s_lshl_b32 s10, s9, 4
s_lshl_b32 s11, s3, 2
s_add_u32 s10, s10, s11
s_lshl_b32 s10, s10, 12
s_lshl_b32 s11, s14, 6
s_add_u32 s10, s10, s11
s_add_u32 s10, s10, {WS_P3}
s_add_u32 s11, s10, 8192
v_mov_b32 v41, s8
v_mov_b32 v43, s8
""")
    a("s_waitcnt lgkmcnt(0)\ns_barrier")
    stamp_at(10)
    a(f"""
ds_read_b128 v[64:67], v9
ds_read_b128 v[68:71], v9 offset:256
ds_read_b128 v[72:75], v9 offset:{XH-XO}
ds_read_b32 v11, v10
""")
    for u in range(2):
        for s in range(3):
            for hf in range(2):
                r = 96 + (u*3+s)*4 + 2*hf
                a(f"ds_read_b64_tr_b16 v[{r}:{r+1}], v{6+u} offset:{s*8192+hf*4096}")
    a("s_waitcnt lgkmcnt(6)")
    for u in range(2):
        b0 = 16 + 8*u
        r = 96 + u*12
        if u == 1: a("s_waitcnt lgkmcnt(0)")
        a(f"v_mfma_f32_16x16x32_bf16 v[{b0+4}:{b0+7}], v[72:75], v[{r+8}:{r+11}], 0")
        a(f"v_mfma_f32_16x16x32_bf16 v[{b0}:{b0+3}], v[64:67], v[{r}:{r+3}], 0")
        a(f"v_mfma_f32_16x16x32_bf16 v[{b0}:{b0+3}], v[68:71], v[{r+4}:{r+7}], v[{b0}:{b0+3}]")
    a(f"""
v_sub_f32 v12, 1.0, v11
s_nop 3
v_mul_f32 v20, v20, v12
v_fma_f32 v40, v16, v11, v20
buffer_store_dwordx2 v[40:41], v14, s[44:47], s10 offen sc1
v_mul_f32 v28, v28, v12
s_nop 0
v_fma_f32 v42, v24, v11, v28
buffer_store_dwordx2 v[42:43], v14, s[44:47], s11 offen sc1
""")
    stamp_at(11)
    a(f"""
s_cmp_lg_u32 s3, 0
s_cbranch_scc1 L_W123
s_lshl_b32 s10, s2, 12
s_add_u32 s10, s10, {WS_P3}
v_lshlrev_b32 v8, 4, v0
""")
    if not ypipe:
        loads = [f"buffer_load_dwordx4 v[{64+4*i}:{67+4*i}], v8, s[44:47], s10 offen offset:{1024*i} sc1" for i in range(4)]
        poll(loads, [65+2*i for i in range(8)], "y", slp=yslp)
        a("v_add_f32 v16, v64, v68\nv_add_f32 v17, v66, v70\nv_add_f32 v18, v72, v76\nv_add_f32 v19, v74, v78")
    else:
        def yissue(k):
            for i in range(4):
                r = 64 + 16*k + 4*i
                a(f"buffer_load_dwordx4 v[{r}:{r+3}], v8, s[44:47], s10 offen offset:{1024*i} sc1")
        a(f"s_mov_b32 s62, {poll_limit}")
        for k in range(3):
            yissue(k)
            if yper: a(f"s_sleep {yper}")
        a.label("L_YP")
        for k in range(4):
            yissue((k+3) % 4)
            a("s_waitcnt vmcnt(12)")
            for i in range(8):
                a(f"v_cmpx_eq_u32 vcc, s8, v{65+16*k+2*i}")
            a("s_cmp_eq_u64 exec, -1")
            a("s_mov_b64 exec, -1")
            a(f"s_cbranch_scc1 L_YD{k}")
            if yper: a(f"s_sleep {yper}")
        a("s_sub_u32 s62, s62, 1")
        a("s_cbranch_scc0 L_YP")
        for k in (3, 2, 1, 0):
            a.label(f"L_YD{k}")
            r = 64 + 16*k
            a(f"v_add_f32 v16, v{r}, v{r+4}\nv_add_f32 v17, v{r+2}, v{r+6}\nv_add_f32 v18, v{r+8}, v{r+12}\nv_add_f32 v19, v{r+10}, v{r+14}")
            if k: a("s_branch L_YC")
        a.label("L_YC")
    stamp_at(12)
    signal(C_FIN, wait_lds=False)
    a(f"""
v_add_f32 v16, v16, v18
v_add_f32 v17, v17, v19
s_nop 1
v_add_f32_dpp v16, v16, v16 row_ror:4 row_mask:0xf bank_mask:0xf
v_add_f32_dpp v17, v17, v17 row_ror:4 row_mask:0xf bank_mask:0xf
s_nop 1
v_add_f32_dpp v16, v16, v16 row_ror:8 row_mask:0xf bank_mask:0xf
v_add_f32_dpp v17, v17, v17 row_ror:8 row_mask:0xf bank_mask:0xf
v_mov_b32 v18, v16
v_mov_b32 v19, v17
s_nop 1
v_permlane16_swap_b32 v16, v18
v_permlane16_swap_b32 v17, v19
v_add_f32 v16, v16, v18
v_add_f32 v17, v17, v19
v_mov_b32 v18, v16
v_mov_b32 v19, v17
s_nop 1
v_permlane32_swap_b32 v16, v18
v_permlane32_swap_b32 v17, v19
v_add_f32 v16, v16, v18
v_add_f32 v17, v17, v19
s_mov_b32 s48, s36
s_mov_b32 s49, s37
s_mov_b32 s50, 4096
v_cvt_pk_bf16_f32 v16, v16, v17
v_lshlrev_b32 v8, 2, v0
s_lshl_b32 s10, s2, 4
s_mov_b64 exec, 15
buffer_store_dword v16, v8, s[48:51], s10 offen sc1
s_mov_b32 exec_lo, 0x00010001
s_mov_b32 exec_hi, 0x00010001
{"buffer_store_dwordx2 v[162:163], v161, s[52:55], s95 offen sc1" if cleanup else ""}
s_cmp_lg_u32 s2, 0
s_cbranch_scc1 L_CLEAN
s_mov_b64 exec, 1
v_add_u32 v5, 1, v5
buffer_store_dword v5, v4, s[44:47], 0 offen sc1
s_branch L_CLEAN
L_W123:
""")
    if cleanup: spin(C_FIN, 1, "fin")
    a.label("L_CLEAN")
    a("s_mov_b64 exec, -1")
    if cleanup:
        a("""
buffer_store_dwordx2 v[132:133], v160, s[52:55], s94 offen sc1
s_cmp_eq_u32 s101, 0
s_cbranch_scc1 L_FIN
buffer_store_dwordx4 v[164:167], v172, s[52:55], s100 offen sc1
buffer_store_dwordx4 v[168:171], v172, s[52:55], s100 offen offset:1024 sc1
""")
    a("s_branch L_FIN")
    a.label("L_GB")
    a(f"""
s_sub_u32 s9, s3, 4
s_lshl_b32 s10, s6, 3
s_add_u32 s10, s10, s4
s_lshl_b32 s10, s10, 21
s_lshl_b32 s11, s7, 16
s_add_u32 s13, s10, s11
s_add_u32 s13, s13, {6144*256}
s_mov_b32 s50, 65536
s_mov_b32 s54, 65536
s_mul_i32 s10, s2, {rot}
s_add_u32 s10, s10, s9
s_and_b32 s10, s10, 63
s_and_b32 s11, s10, 3
s_lshl_b32 s11, s11, 2
v_add_u32 v6, s11, v2
v_xor_b32 v6, v6, v1
v_lshlrev_b32 v6, 4, v6
v_lshl_add_u32 v6, v2, 8, v6
s_and_b32 s11, s10, 1
s_lshl_b32 s11, s11, 2
v_add_u32 v7, s11, v2
v_lshlrev_b32 v7, 1, v7
v_xor_b32 v7, v7, v1
v_lshlrev_b32 v7, 4, v7
v_lshl_add_u32 v7, v2, 8, v7
v_mov_b32 v8, 0
v_mov_b32 v9, 0
v_mov_b32 v10, 0
v_mov_b32 v11, 0
ds_write_b128 v62, v[8:11]
ds_write_b128 v62, v[8:11] offset:16
ds_write_b128 v62, v[8:11] offset:48
v_mov_b32 v60, {C_QK}
s_mov_b32 s12, 16
s_waitcnt lgkmcnt(0)
""")
    stamp_at(14)
    a(f"""
s_add_u32 s48, s18, s13
s_addc_u32 s49, s19, 0
s_add_u32 s52, s20, s13
s_addc_u32 s53, s21, 0
s_mov_b32 s44, s40
s_mov_b32 s45, s41
{"s_barrier" if pre == 0 else ""}
L_KL:
s_lshl_b32 s11, s10, 10
s_mov_b32 m0, s11
s_add_u32 s10, s10, 4
s_and_b32 s10, s10, 63
s_waitcnt vmcnt({dK-1})
buffer_load_dwordx4 v6, s[48:51], s11 offen{NT} lds
s_sub_u32 s12, s12, 1
{"" if pre == 0 else f"s_cmp_lg_u32 s12, {16-pre}" + chr(10) + "s_cbranch_scc1 L_KL2" + chr(10) + "s_barrier" + chr(10) + "L_KL2:"}
s_cmp_lg_u32 s12, 0
s_cbranch_scc1 L_KL
s_and_b32 s10, s10, 31
s_mov_b32 s13, 0
""")
    stamp_at(2)
    a(f"""
s_mov_b32 s12, 0
s_mov_b32 s15, {dV-1}
L_VL:
s_cmp_lg_u32 s12, 8
s_cbranch_scc1 L_V1
""")
    if exp is None: spin(C_P1, 4, "p1")
    a(f"""
s_mov_b32 s13, 32768
L_V1:
s_lshl_b32 s11, s10, 10
s_add_u32 s11, s11, s13
s_add_u32 m0, s11, {LV}
s_add_u32 s10, s10, 4
s_and_b32 s10, s10, 31
s_waitcnt vmcnt({dV-1})
s_cmp_lg_u32 s12, s15
s_cbranch_scc1 L_V2
s_mov_b64 exec, 1
ds_add_u32 v60, v63
s_mov_b64 exec, -1
v_add_u32 v60, 4, v60
s_add_u32 s15, s15, 8
L_V2:
buffer_load_dwordx4 v7, s[52:55], s11 offen{NT} lds
s_add_u32 s12, s12, 1
s_cmp_lt_u32 s12, 16
s_cbranch_scc1 L_VL
""")
    stamp_at(3)
    a(f"""
s_lshl_b32 s10, s4, 2
s_add_u32 s10, s10, s6
s_lshl_b32 s14, s10, 1
s_bfe_u32 s11, s5, 0x10002
s_add_u32 s14, s14, s11
s_and_b32 s11, s5, 3
s_lshl_b32 s11, s11, 8
s_lshl_b32 s12, s14, 16
s_add_u32 s12, s12, s11
s_add_u32 s48, s24, s12
s_addc_u32 s49, s25, 0
s_sub_u32 s50, 4194304, s12
s_mul_i32 s12, s14, {28*1024}
s_add_u32 s12, s12, s11
s_add_u32 s52, s32, s12
s_addc_u32 s53, s33, 0
s_sub_u32 s54, 1835008, s12
v_lshlrev_b32 v6, 1, v2
v_xor_b32 v6, v6, v1
v_lshlrev_b32 v6, 4, v6
v_lshl_add_u32 v6, v2, 10, v6
v_xor_b32 v7, 0x80, v6
s_lshl_b32 s10, s9, 14
s_lshl_b32 s11, s9, 12
s_add_u32 s11, s11, {W3}
""")
    k = 0
    dWw = dW if dW is not None else dV
    done = {"VA": dV+7 <= 15, "VB": False}
    def w3step(srd, vreg, soff_line, m0_line):
        nonlocal k
        a(m0_line); a(soff_line)
        if not done["VA"] and dWw-1 > 8 + k:
            pass
        a(f"s_waitcnt vmcnt({dWw-1})")
        if not done["VA"] and dWw-1 <= 8 + k: signal(C_VA, wait_lds=False); done["VA"] = True
        if not done["VB"] and dWw-1 <= k: signal(C_VB, wait_lds=False); done["VB"] = True
        a(f"buffer_load_dwordx4 v{vreg}, {srd}, s12 offen{NT} lds")
        k += 1
    if dWw - 1 > 0 and dW is not None:
        pass
    for ii in range(4):
        w3step("s[48:51]", 6+(ii&1), f"s_add_u32 s12, s10, {ii*4096}", f"s_add_u32 m0, s11, {ii*1024}")
    a(f"""
s_lshl_b32 s10, s9, 13
s_lshl_b32 s11, s9, 11
s_add_u32 s11, s11, {W3+16384}
""")
    for ii in range(2):
        w3step("s[52:55]", 6+(ii&1), f"s_add_u32 s12, s10, {ii*4096}\ns_min_u32 s12, s12, {6*4096}", f"s_add_u32 m0, s11, {ii*1024}")
    if not done["VA"]:
        a("s_waitcnt vmcnt(14)"); signal(C_VA, wait_lds=False)
    if not done["VB"]:
        a("s_waitcnt vmcnt(6)"); signal(C_VB, wait_lds=False)
    stamp_at(4)
    a("s_waitcnt vmcnt(0)")
    stamp_at(10)
    a.label("L_FIN")
    a("s_mov_b64 exec, -1")
    if dbg is not None:
        stamp_at(13)
        a(f"""
s_waitcnt lgkmcnt(0) vmcnt(0)
s_cmp_lg_u32 s2, {dbg}
s_cbranch_scc1 L_end
s_cmp_lg_u32 s3, 0
s_cbranch_scc1 L_end
s_mov_b32 s48, s38
s_mov_b32 s49, s39
s_mov_b32 s50, 256
v_mov_b32 v4, 0
s_mov_b64 exec, 1
""")
        for i in range(15):
            a(f"s_sub_u32 s10, s{64+2*i}, s64")
            a(f"v_mov_b32 v6, s10")
            a(f"buffer_store_dword v6, v4, s[48:51], 0 offen offset:{4*i}")
    elif stamps:
        stamp_at(13)
        a(f"""
s_waitcnt lgkmcnt(0) vmcnt(0)
s_mov_b32 s46, {WS_STAMP+256*8*64}
s_lshl_b32 s10, s2, 3
s_add_u32 s10, s10, s3
s_lshl_b32 s10, s10, 6
s_add_u32 s10, s10, {WS_STAMP}
v_mov_b32 v4, 0
s_mov_b64 exec, 1
""")
        for i in range(15):
            a(f"v_mov_b32 v6, s{64+2*i}")
            a(f"buffer_store_dword v6, v4, s[44:47], s10 offen offset:{4*i} sc1")
        a("s_getreg_b32 s11, hwreg(HW_REG_XCC_ID)")
        a("v_mov_b32 v6, s11")
        a(f"buffer_store_dword v6, v4, s[44:47], s10 offen offset:{4*15} sc1")
    a("L_end:")
    a("s_endpgm")
    return a.text()

HEADER = open("gated_mix__sliding_block_cached__glu_gated_swiglu__decode.s.ref").read().split("; Override launch geometry")[0]

def full(**kw):
    return wrap(gen(**kw), 256, 512, 163840, vgpr=192, sgpr=102, header=HEADER)

if __name__ == "__main__":
    open("k9.s", "w").write(full())
    open("k9_diag.s", "w").write(full(stamps=True))
    for nm, kw in {"dW1": dict(dW=1), "dW2": dict(dW=2), "dW3": dict(dW=3), "dW4": dict(dW=4), "dV12W2": dict(dV=12, dW=2)}.items():
        open(f"k9_diag_{nm}.s", "w").write(full(stamps=True, **kw))
        open(f"k9_{nm}.s", "w").write(full(**kw))
```

```python
import sys
from gen_common import *

WS_P1  = 0x1000
WS_P2  = 0x90000
WS_P3  = 0x110000
WS_P2L = 0x210000
WS_END = 0x220000
WS_STAMP = 0x300000
AOFF = 0x400000
LK, LV, LVB, LC = 0, 65536, 98304, 131072
W3 = LC
S0 = LC + 24576
C_P1, C_QK, C_VA, C_VB, C_P, C_S = [S0 + 4*i for i in range(6)]
GG, ML, QQ, XO, XH, PP = S0+32, S0+128, S0+512, S0+6656, S0+7168, S0+2560
PART = S0 + 1536
HASH = 0x9E3779B1
SCALE_LOG2E = 0.08838834764831845 * 1.4426950408889634
LOG2E = 1.4426950408889634

def f32hex(x):
    import struct
    return "0x%08x" % struct.unpack("<I", struct.pack("<f", x))[0]

def gen(stamps=False, dK=5, dV=7, rot=5, poll_limit=20000, pre=1, spin_sleep=1,
        qsleep=2, qslp=1, osleep=3, oslp=1, ysleep=24, yslp=1, hslp=4, bper=16, dW=None, dVB=None, w3late=0):
    a = Asm()
    NT = " nt"
    def stamp_at(i):
        if stamps:
            a(f"s_memrealtime s[{64+2*i}:{65+2*i}]")
    def exec_n4():
        a("s_mov_b32 exec_lo, 0x000F000F\ns_mov_b32 exec_hi, 0x000F000F")
    def exec_all():
        a("s_mov_b64 exec, -1")
    def poll(loads, tags, name, first_sleep=0, mask=None, preissued=False, slp=1, dual=False, lateB=None, R=8, cond=None, after_issue=None):
        L = a.newlabel("Lpoll_"+name); D = a.newlabel("Ldone_"+name); C2 = a.newlabel("Lchk_"+name)
        N1 = a.newlabel("Lnb_"+name); N2 = a.newlabel("Lnb_"+name)
        lim = poll_limit - (poll_limit % bper) + bper - 1
        a(f"s_mov_b32 s62, {lim}")
        if first_sleep: a(f"s_sleep {first_sleep}")
        if mask: a(mask)
        if preissued:
            a(f"s_branch {C2}")
        if after_issue:
            if dual:
                a("s_mov_b32 s56, s98")
                a("s_mov_b32 s57, s99")
            for ln in loads: a(ln)
            after_issue()
            a(f"s_branch {C2}")
        a.label(L)
        if lateB:
            a(f"s_cmp_lg_u32 s62, {lim-R}")
            a(f"s_cbranch_scc1 {N1}")
            if cond:
                a(f"s_cmp_eq_u32 {cond}, 0")
                a(f"s_cbranch_scc1 {N1}")
            a("s_mov_b64 s[60:61], exec")
            a("s_mov_b64 exec, -1")
            a(lateB)
            a("s_mov_b64 exec, s[60:61]")
            a.label(N1)
        if dual:
            a(f"s_and_b32 s63, s62, {bper-1}")
            a("s_cselect_b32 s56, s98, s40")
            a("s_cselect_b32 s57, s99, s41")
        for ln in loads: a(ln)
        a.label(C2)
        a("s_waitcnt vmcnt(0)")
        for i, t in enumerate(tags):
            if i == 0: a(f"v_cmp_ne_u32 vcc, s8, v{t}")
            else:
                a(f"v_cmp_ne_u32 s[60:61], s8, v{t}")
                a("s_or_b64 vcc, vcc, s[60:61]")
        a("s_mov_b64 exec, vcc")
        a(f"s_cbranch_execz {D}")
        a("s_sub_u32 s62, s62, 1")
        a(f"s_cbranch_scc1 {D}")
        if slp: a(f"s_sleep {slp}")
        a(f"s_branch {L}")
        a.label(D)
        a("s_mov_b64 exec, -1")
        if lateB:
            a(f"s_cmp_le_u32 s62, {lim-R}")
            a(f"s_cbranch_scc1 {N2}")
            if cond:
                a(f"s_cmp_eq_u32 {cond}, 0")
                a(f"s_cbranch_scc1 {N2}")
            a(lateB)
            a("s_mov_b64 exec, -1")
            a.label(N2)
    def signal(cnt, wait_lds=True):
        if wait_lds: a("s_waitcnt lgkmcnt(0)")
        a("s_mov_b64 exec, 1")
        a(f"ds_add_u32 v62, v63 offset:{cnt-S0}")
        a("s_mov_b64 exec, -1")
    def spin(cnt, target, name):
        L = a.newlabel("Lspin_"+name); D = a.newlabel("Lsd_"+name)
        a(f"s_mov_b32 s62, {poll_limit*8}")
        a.label(L)
        a(f"ds_read_b32 v61, v62 offset:{cnt-S0}")
        a("s_waitcnt lgkmcnt(0)")
        a("v_readfirstlane_b32 s63, v61")
        a(f"s_cmp_ge_u32 s63, {target}")
        a(f"s_cbranch_scc1 {D}")
        a("s_sub_u32 s62, s62, 1")
        a(f"s_cbranch_scc1 {D}")
        if spin_sleep: a(f"s_sleep {spin_sleep}")
        a(f"s_branch {L}")
        a.label(D)

    a(f"""
s_cmp_ge_u32 s2, 256
s_cbranch_scc1 L_end
""")
    stamp_at(0)
    a(f"""
s_load_dwordx16 s[16:31], s[0:1], 0
s_load_dwordx8 s[32:39], s[0:1], 64
s_load_dwordx2 s[40:41], s[0:1], 96
v_lshrrev_b32 v1, 6, v0
v_and_b32 v0, 63, v0
v_readfirstlane_b32 s3, v1
v_and_b32 v1, 15, v0
v_lshrrev_b32 v2, 4, v0
v_and_b32 v3, 3, v0
v_lshrrev_b32 v58, 2, v1
s_and_b32 s4, s2, 7
s_lshr_b32 s5, s2, 3
s_lshr_b32 s6, s5, 3
s_and_b32 s7, s5, 7
v_mov_b32 v62, {S0}
v_mov_b32 v63, 1
s_mov_b32 s51, 0x00020000
s_mov_b32 s55, 0x00020000
s_cmp_ge_u32 s3, 4
s_cbranch_scc1 L_GB
; ================= group A =================
s_lshl_b32 s9, s4, 4
s_add_u32 s9, s9, s5
s_mul_i32 s10, s4, 14
s_add_u32 s10, s10, s5
s_add_u32 s10, s10, 112
s_cmp_ge_u32 s5, 16
s_cselect_b32 s9, s10, s9
s_movk_i32 s12, 8192
s_movk_i32 s13, 3584
s_mov_b32 s14, 4194304
s_mov_b32 s15, 1835008
s_cselect_b32 s12, s13, s12
s_cselect_b32 s14, s15, s14
s_cselect_b32 s10, 128, 0
s_cmp_ge_u32 s9, 184
s_cselect_b32 s10, 184, s10
s_sub_u32 s10, s9, s10
s_and_b32 s11, s10, 1
s_lshr_b32 s10, s10, 1
s_lshl_b32 s10, s10, 7
s_lshl_b32 s13, s12, 8
s_mul_i32 s13, s13, s11
s_add_u32 s10, s10, s13
s_sub_u32 s50, s14, s10
s_cmp_ge_u32 s5, 30
s_cselect_b32 s50, 0, s50
s_cselect_b32 s9, 255, s9
v_lshrrev_b32 v6, 3, v0
v_mul_lo_u32 v6, v6, s12
v_and_b32 v8, 7, v0
v_bfe_u32 v9, v0, 4, 1
v_lshlrev_b32 v9, 1, v9
v_xor_b32 v8, v8, v9
v_lshl_add_u32 v6, v8, 4, v6
v_xor_b32 v7, 64, v6
s_lshl_b32 s15, s12, 6
s_mul_i32 s15, s15, s3
s_lshl_b32 s13, s12, 3
s_lshl_b32 s14, s3, 13
s_add_u32 s14, s14, {LVB}
s_mov_b32 m0, s14
s_add_u32 s14, s14, 8192
v_lshlrev_b32 v8, 10, v3
v_lshl_add_u32 v8, v2, 4, v8
v_lshlrev_b32 v9, 4, v2
v_mov_b32 v4, 0
v_lshlrev_b32 v172, 4, v0
s_lshl_b32 s60, s11, 9
s_lshl_b32 s61, s3, 7
s_add_u32 s60, s60, s61
s_lshl_b32 s61, s3, 8
s_mov_b32 s46, {WS_END}
s_mov_b32 s47, 0x00020000
s_mov_b32 s54, 4096
s_mov_b32 s58, 1024
s_mov_b32 s59, 0x00020000
s_waitcnt lgkmcnt(0)
""")
    stamp_at(14)
    a(f"""
s_mov_b32 s44, s40
s_mov_b32 s45, s41
s_mov_b32 s52, s16
s_mov_b32 s53, s17
s_mov_b32 s56, s34
s_mov_b32 s57, s35
buffer_load_dword v5, v4, s[44:47], 0 offen sc1
""")
    exec_n4()
    for s in range(2):
        a(f"buffer_load_dwordx4 v[{64+4*s}:{67+4*s}], v8, s[52:55], s60 offen offset:{64*s}")
    for s in range(4):
        a(f"buffer_load_dwordx4 v[{72+4*s}:{75+4*s}], v8, s[52:55], s61 offen offset:{64*s}")
    a("s_mov_b32 exec_lo, 0x00010001\ns_mov_b32 exec_hi, 0x00010001")
    for s in range(4):
        a(f"buffer_load_dwordx4 v[{88+4*s}:{91+4*s}], v9, s[56:59], s61 offen offset:{64*s}")
    exec_all()
    a(f"""
s_cmp_ge_u32 s9, 128
s_cselect_b32 s48, s28, s22
s_cselect_b32 s49, s29, s23
s_cmp_ge_u32 s9, 184
s_cselect_b32 s48, s30, s48
s_cselect_b32 s49, s31, s49
s_add_u32 s48, s48, s10
s_addc_u32 s49, s49, 0
L_W1:
buffer_load_dwordx4 v6, s[48:51], s15 offen{NT} lds
s_add_u32 s15, s15, s13
s_add_u32 m0, m0, 1024
s_nop 0
buffer_load_dwordx4 v7, s[48:51], s15 offen{NT} lds
s_add_u32 s15, s15, s13
s_add_u32 m0, m0, 1024
s_cmp_lt_u32 m0, s14
s_cbranch_scc1 L_W1
s_barrier
""")
    stamp_at(1)
    a(f"""
v_lshl_add_u32 v9, v2, 3, v58
v_lshlrev_b32 v9, 7, v9
v_bfe_u32 v10, v1, 3, 1
v_and_b32 v11, 1, v2
v_lshl_add_u32 v10, v11, 1, v10
v_lshl_add_u32 v9, v10, 5, v9
v_lshl_add_u32 v9, v3, 3, v9
s_lshl_b32 s14, s3, 13
s_add_u32 s14, s14, {LVB}
v_add_u32 v10, s14, v9
v_xor_b32 v11, 32, v10
v_xor_b32 v12, 64, v10
v_xor_b32 v13, 96, v10
v_lshlrev_b32 v8, 6, v2
v_lshl_add_u32 v8, v1, 4, v8
s_mul_i32 s10, s3, 1280
s_add_u32 s10, s10, {PART}
v_add_u32 v8, s10, v8
s_add_u32 s98, s40, {AOFF}
s_addc_u32 s99, s41, 0
s_mov_b32 s52, s98
s_mov_b32 s53, s99
s_mov_b32 s54, {WS_END}
s_mov_b32 s58, {WS_END}
s_mov_b32 s101, 0
s_lshl_b32 s100, s9, 11
s_add_u32 s100, s100, {WS_P1}
s_waitcnt vmcnt(0)
""")
    stamp_at(2)
    for s in range(2):
        for ct in range(4):
            for hf in range(2):
                r = 104 + (s*4+ct)*4 + 2*hf
                a(f"ds_read_b64_tr_b16 v[{r}:{r+1}], v{10+ct} offset:{s*4096+hf*512}")
    for s in range(4):
        c = "0" if s == 0 else "v[32:35]"
        a(f"v_mfma_f32_16x16x32_bf16 v[32:35], v[{88+4*s}:{91+4*s}], v[{72+4*s}:{75+4*s}], {c}")
    a(f"v_readfirstlane_b32 s8, v5\ns_add_u32 s8, s8, 1\ns_mul_i32 s8, s8, {HASH:#x}")
    for s in range(2):
        for ct in range(4):
            c = "0" if s == 0 else f"v[{16+4*ct}:{19+4*ct}]"
            r = 104 + (s*4+ct)*4
            if ct == 0: a(f"s_waitcnt lgkmcnt({8 if s == 0 else 0})")
            a(f"v_mfma_f32_16x16x32_bf16 v[{16+4*ct}:{19+4*ct}], v[{r}:{r+3}], v[{64+4*s}:{67+4*s}], {c}")
    a("s_nop 5")
    exec_n4()
    for t in range(5):
        a(f"ds_write_b128 v8, v[{16+4*t}:{19+4*t}] offset:{256*t}")
    a(f"""
s_mov_b64 exec, 1
s_waitcnt lgkmcnt(0)
ds_add_rtn_u32 v11, v62, v63
s_mov_b64 exec, -1
v_bfe_u32 v8, v0, 3, 2
v_lshlrev_b32 v8, 8, v8
v_bfe_u32 v10, v0, 1, 2
v_lshl_add_u32 v8, v10, 6, v8
v_lshrrev_b32 v10, 5, v0
v_lshl_add_u32 v8, v10, 4, v8
v_and_b32 v10, 1, v0
v_lshl_add_u32 v8, v10, 3, v8
v_add_u32 v8, {PART}, v8
v_lshlrev_b32 v9, 4, v3
v_add_u32 v9, {PART+1024}, v9
v_mov_b32 v165, s8
v_mov_b32 v167, s8
v_mov_b32 v169, s8
v_mov_b32 v171, s8
s_waitcnt lgkmcnt(0)
v_readfirstlane_b32 s10, v11
s_cmp_lg_u32 s10, 3
s_cbranch_scc1 L_QP
""")
    for k in range(2):
        for w in range(4):
            r = 16 + (k*4+w)*2
            a(f"ds_read_b64 v[{r}:{r+1}], v8 offset:{1280*w+32*k}")
    for w in range(4):
        a(f"ds_read_b32 v{32+w}, v9 offset:{1280*w}")
    a(f"""
s_waitcnt lgkmcnt(4)
v_add_f32 v16, v16, v18
v_add_f32 v17, v17, v19
v_add_f32 v20, v20, v22
v_add_f32 v21, v21, v23
v_add_f32 v24, v24, v26
v_add_f32 v25, v25, v27
v_add_f32 v28, v28, v30
v_add_f32 v29, v29, v31
v_add_f32 v164, v16, v20
v_add_f32 v166, v17, v21
v_add_f32 v168, v24, v28
v_add_f32 v170, v25, v29
s_cmp_ge_u32 s9, 128
s_cbranch_scc1 L_NOA1
s_mov_b32 s101, 1
buffer_store_dwordx4 v[164:167], v172, s[52:55], s100 offen
buffer_store_dwordx4 v[168:171], v172, s[52:55], s100 offen offset:1024
s_branch L_NOA2
L_NOA1:
buffer_store_dwordx4 v[164:167], v172, s[44:47], s100 offen sc1
buffer_store_dwordx4 v[168:171], v172, s[44:47], s100 offen offset:1024 sc1
L_NOA2:
s_waitcnt lgkmcnt(0)
v_add_f32 v32, v32, v33
v_add_f32 v34, v34, v35
v_add_f32 v32, v32, v34
v_mul_f32 v32, {f32hex(-LOG2E)}, v32
v_exp_f32 v32, v32
v_lshlrev_b32 v9, 2, v0
v_add_f32 v32, 1.0, v32
v_rcp_f32 v32, v32
v_add_u32 v9, {GG}, v9
s_mov_b64 exec, 15
ds_write_b32 v9, v32
s_mov_b64 exec, -1
L_QP:
""")
    stamp_at(3)
    a(f"""
v_lshrrev_b32 v9, 5, v0
v_lshlrev_b32 v9, 12, v9
v_and_b32 v10, 31, v0
v_lshl_add_u32 v9, v10, 4, v9
s_lshl_b32 s10, s4, 4
s_lshl_b32 s11, s3, 2
s_add_u32 s10, s10, s11
s_lshl_b32 s10, s10, 11
s_lshl_b32 s11, s6, 9
s_add_u32 s10, s10, s11
s_add_u32 s10, s10, {WS_P1}
""")
    poll(["buffer_load_dwordx4 v[24:27], v9, s[56:59], s10 offen sc1",
          "buffer_load_dwordx4 v[28:31], v9, s[56:59], s10 offen offset:2048 sc1"], [25, 27, 29, 31], "q",
         first_sleep=qsleep, slp=qslp, dual=True, cond="s101", R=3,
         lateB="buffer_store_dwordx4 v[164:167], v172, s[44:47], s100 offen sc1\nbuffer_store_dwordx4 v[168:171], v172, s[44:47], s100 offen offset:1024 sc1")
    a(f"""
s_lshl_b32 s10, s3, 8
s_add_u32 s10, s10, {QQ}
v_add_f32 v24, v24, v28
v_add_f32 v26, v26, v30
v_lshlrev_b32 v9, 2, v0
v_add_u32 v9, s10, v9
v_cvt_pk_bf16_f32 v24, v24, v26
ds_write_b32 v9, v24
""")
    signal(C_QK)
    stamp_at(4)
    a(f"""
v_xor_b32 v8, v2, v1
s_lshl_b32 s10, s3, 14
v_lshl_add_u32 v9, v1, 8, s10
v_lshl_add_u32 v10, v8, 4, v9
v_xor_b32 v11, 64, v10
v_xor_b32 v12, 128, v10
v_xor_b32 v13, 192, v10
v_lshlrev_b32 v14, 8, v58
v_lshl_add_u32 v14, v2, 4, v14
v_add_u32 v14, {QQ}, v14
s_mov_b32 s12, {f32hex(SCALE_LOG2E)}
v_lshlrev_b32 v36, 6, v2
v_lshl_add_u32 v36, v58, 4, v36
s_lshl_b32 s11, s3, 9
s_add_u32 s11, s11, {PP}
v_add_u32 v37, s11, v36
v_lshlrev_b32 v38, 5, v58
s_lshl_b32 s11, s3, 2
s_add_u32 s11, s11, {ML}
v_add_u32 v39, s11, v38
s_lshl_b32 s13, s4, 2
s_add_u32 s13, s13, s6
s_lshl_b32 s14, s13, 1
s_bfe_u32 s15, s5, 0x10002
s_add_u32 s14, s14, s15
v_min_u32 v8, 13, v1
s_mul_i32 s10, s14, 28
v_lshl_add_u32 v9, v8, 1, s10
v_lshrrev_b32 v59, 6, v9
v_lshlrev_b32 v59, 12, v59
v_and_b32 v8, 63, v9
v_lshl_add_u32 v59, v8, 3, v59
s_lshl_b32 s10, s3, 9
s_add_u32 s96, s10, {WS_P1+128*2048}
s_add_u32 s97, s10, {WS_P1+184*2048}
""")
    spin(C_QK, 8, "qk")
    stamp_at(5)
    for j in range(4):
        a(f"ds_read_b128 v[{64+4*j}:{67+4*j}], v14 offset:{64*j}")
    for tt in range(4):
        for j in range(4):
            r = 80+(tt*4+j)*4
            a(f"ds_read_b128 v[{r}:{r+3}], v{10+j} offset:{tt*4096}")
    for tt in range(4):
        a(f"s_waitcnt lgkmcnt({12-4*tt})")
        for j in range(4):
            r = 80+(tt*4+j)*4
            c = "0" if j == 0 else f"v[{16+4*tt}:{19+4*tt}]"
            a(f"v_mfma_f32_16x16x32_bf16 v[{16+4*tt}:{19+4*tt}], v[{r}:{r+3}], v[{64+4*j}:{67+4*j}], {c}")
    HL = ["buffer_load_dwordx4 v[144:147], v59, s[44:47], s96 offen sc1",
          "buffer_load_dwordx4 v[148:151], v59, s[44:47], s96 offen offset:2048 sc1",
          "buffer_load_dwordx4 v[152:155], v59, s[44:47], s97 offen sc1",
          "buffer_load_dwordx4 v[156:159], v59, s[44:47], s97 offen offset:2048 sc1"]
    a("s_mov_b64 exec, 0xffff")
    for ln in HL: a(ln)
    exec_all()
    a(f"""
v_max3_f32 v32, v16, v17, v18
v_max3_f32 v33, v19, v20, v21
v_max3_f32 v32, v32, v22, v23
v_max3_f32 v33, v33, v24, v25
v_max3_f32 v32, v32, v26, v27
v_max3_f32 v33, v33, v28, v29
v_max3_f32 v32, v32, v30, v31
v_max_f32 v32, v32, v33
v_mov_b32 v33, v32
s_nop 1
v_permlane32_swap_b32 v32, v33
v_max_f32 v32, v32, v33
v_mov_b32 v33, v32
s_nop 1
v_permlane16_swap_b32 v32, v33
v_max_f32 v32, v32, v33
v_mul_f32 v32, s12, v32
""")
    for i in range(16):
        a(f"v_fma_f32 v{16+i}, v{16+i}, s12, -v32")
    for i in range(16):
        a(f"v_exp_f32 v{16+i}, v{16+i}")
    for i in range(8):
        a(f"v_cvt_pk_bf16_f32 v{40+i}, v{16+2*i}, v{17+2*i}")
    for i in range(8):
        a(f"v_add_f32 v{16+2*i}, v{16+2*i}, v{17+2*i}")
    a(f"""
v_add_f32 v16, v16, v18
v_add_f32 v20, v20, v22
v_add_f32 v24, v24, v26
v_add_f32 v28, v28, v30
v_add_f32 v16, v16, v20
v_add_f32 v24, v24, v28
v_add_f32 v33, v16, v24
v_mov_b32 v34, v33
s_mov_b32 exec_lo, 0x11111111
s_mov_b32 exec_hi, 0x11111111
ds_write_b128 v37, v[40:43]
ds_write_b128 v37, v[44:47] offset:256
s_mov_b64 exec, -1
v_permlane32_swap_b32 v33, v34
v_add_f32 v33, v33, v34
v_mov_b32 v34, v33
s_nop 1
v_permlane16_swap_b32 v33, v34
v_add_f32 v33, v33, v34
s_mov_b64 exec, 0x1111
ds_write_b32 v39, v32
ds_write_b32 v39, v33 offset:16
s_mov_b64 exec, -1
""")
    signal(C_P)
    stamp_at(6)
    a(f"""
v_add_u32 v36, {PP}, v36
v_lshlrev_b32 v38, 5, v2
v_add_u32 v38, {ML}, v38
v_lshl_add_u32 v9, v2, 2, v58
v_and_b32 v10, 7, v9
v_lshlrev_b32 v10, 1, v10
v_lshrrev_b32 v11, 1, v3
s_lshl_b32 s10, s3, 2
v_add_u32 v11, s10, v11
v_xor_b32 v10, v10, v11
v_lshlrev_b32 v10, 4, v10
v_lshl_add_u32 v10, v9, 8, v10
v_and_b32 v11, 1, v3
v_lshl_add_u32 v10, v11, 3, v10
v_add_u32 v12, {LV}, v10
v_xor_b32 v13, 32, v12
v_add_u32 v6, {W3}, v10
v_xor_b32 v7, 32, v6
s_lshl_b32 s10, s4, 4
s_add_u32 s10, s10, s6
s_lshl_b32 s10, s10, 3
s_add_u32 s10, s10, s7
v_lshlrev_b32 v160, 14, v2
v_and_b32 v15, 1, v1
v_lshl_add_u32 v160, v15, 6, v160
v_lshrrev_b32 v15, 1, v1
v_lshl_add_u32 v160, v15, 3, v160
s_lshl_b32 s94, s10, 9
s_lshl_b32 s12, s3, 7
s_add_u32 s94, s94, s12
s_add_u32 s94, s94, {WS_P2}
v_lshlrev_b32 v161, 11, v2
v_lshl_add_u32 v161, v1, 3, v161
s_lshl_b32 s95, s10, 6
s_add_u32 s95, s95, {WS_P2L}
s_lshl_b32 s12, s3, 4
s_mov_b64 s[86:87], 0xff
s_lshl_b64 s[86:87], s[86:87], s12
s_mov_b32 s42, 0xAAAAAAAA
s_mov_b32 s43, 0xAAAAAAAA
s_lshl_b32 s10, s13, 2
s_add_u32 s10, s10, s3
s_lshl_b32 s11, s10, 12
s_lshl_b32 s12, s15, 8
s_add_u32 s11, s11, s12
s_add_u32 s11, s11, {WS_P2}
s_lshl_b32 s12, s10, 9
s_add_u32 s12, s12, {WS_P2L+56}
v_lshlrev_b32 v173, 4, v1
v_lshl_add_u32 v173, v2, 10, v173
v_lshlrev_b32 v174, 7, v2
v_lshrrev_b32 v175, 3, v1
v_lshlrev_b32 v175, 8, v175
v_lshl_add_u32 v175, v3, 4, v175
v_bfe_u32 v15, v1, 2, 1
v_lshl_add_u32 v175, v15, 3, v175
s_lshl_b32 s10, s3, 6
s_add_u32 s10, s10, {XO}
v_add_u32 v175, s10, v175
""")
    spin(C_P, 4, "p")
    for s in range(8):
        a(f"ds_read_b128 v[{64+4*s}:{67+4*s}], v36 offset:{256*s}")
    a(f"""
ds_read_b128 v[48:51], v38
ds_read_b128 v[52:55], v38 offset:16
s_waitcnt lgkmcnt(0)
v_max3_f32 v56, v48, v49, v50
v_max_f32 v56, v56, v51
v_sub_f32 v48, v48, v56
v_sub_f32 v49, v49, v56
v_sub_f32 v50, v50, v56
v_sub_f32 v51, v51, v56
v_exp_f32 v48, v48
v_exp_f32 v49, v49
v_exp_f32 v50, v50
v_exp_f32 v51, v51
s_nop 0
v_mul_f32 v57, v48, v52
v_fmac_f32 v57, v49, v53
v_fmac_f32 v57, v50, v54
v_fmac_f32 v57, v51, v55
v_rcp_f32 v55, v57
v_log_f32 v162, v57
v_mov_b32 v163, s8
v_mov_b32 v133, s8
v_mul_f32 v48, v48, v55
v_mul_f32 v49, v49, v55
v_mul_f32 v50, v50, v55
v_mul_f32 v51, v51, v55
v_add_f32 v162, v162, v56
""")
    def pv_stage(st):
        for u in range(2):
            for sl in range(4):
                s = st*4 + sl
                for hf in range(2):
                    r = 96 + (u*4+sl)*4 + 2*hf
                    a(f"ds_read_b64_tr_b16 v[{r}:{r+1}], v{12+u} offset:{s*8192+hf*4096}")
        n = 16
        for u in range(2):
            for sl in range(4):
                s = st*4 + sl
                tq = s >> 1
                r = 96 + (u*4+sl)*4
                acc = 16 + (u*4+tq)*4
                n -= 2
                a(f"s_waitcnt lgkmcnt({n})")
                c = "0" if (s & 1) == 0 else f"v[{acc}:{acc+3}]"
                a(f"v_mfma_f32_16x16x32_bf16 v[{acc}:{acc+3}], v[{64+4*s}:{67+4*s}], v[{r}:{r+3}], {c}")
    spin(C_VA, 4, "va")
    pv_stage(0)
    a("s_nop 7")
    for u in range(2):
        a(f"v_mul_f32 v{128+u}, v48, v{16+(u*4+0)*4}")
    for u in range(2):
        a(f"v_fmac_f32 v{128+u}, v49, v{16+(u*4+1)*4}")
    poll(HL, [145+2*i for i in range(8)], "h", mask="s_mov_b64 exec, 0xffff", preissued=True, slp=hslp)
    a(f"""
v_add_f32 v16, v144, v148
v_add_f32 v17, v146, v150
v_add_f32 v18, v152, v156
v_add_f32 v19, v154, v158
v_mul_f32 v20, {f32hex(-LOG2E)}, v16
v_mul_f32 v21, {f32hex(-LOG2E)}, v17
v_exp_f32 v20, v20
v_exp_f32 v21, v21
v_mul_f32 v16, v16, v18
v_add_f32 v20, 1.0, v20
v_add_f32 v21, 1.0, v21
v_rcp_f32 v20, v20
v_rcp_f32 v21, v21
v_mul_f32 v17, v17, v19
v_mul_f32 v16, v16, v20
v_mul_f32 v17, v17, v21
v_cvt_pk_bf16_f32 v16, v16, v17
v_cmp_gt_u32 vcc, 14, v1
v_bfe_u32 v23, v1, 1, 2
v_lshlrev_b32 v22, 4, v23
v_lshrrev_b32 v23, 3, v1
v_lshl_add_u32 v22, v23, 3, v22
v_and_b32 v23, 1, v1
v_lshl_add_u32 v22, v23, 2, v22
s_lshl_b32 s10, s3, 6
s_add_u32 s10, s10, {XH}
v_add_u32 v22, s10, v22
v_cndmask_b32 v16, 0, v16, vcc
s_mov_b64 exec, 0xffff
ds_write_b32 v22, v16
s_mov_b64 exec, -1
v_lshlrev_b32 v8, 6, v58
v_lshl_add_u32 v8, v2, 4, v8
v_add_u32 v9, {XO}, v8
v_lshlrev_b32 v10, 2, v2
v_add_u32 v10, {GG}, v10
v_lshlrev_b32 v14, 18, v2
v_lshrrev_b32 v15, 3, v1
v_lshl_add_u32 v14, v15, 12, v14
v_and_b32 v15, 7, v1
v_lshl_add_u32 v14, v15, 3, v14
s_and_b32 s9, s5, 3
s_lshl_b32 s10, s9, 4
s_lshl_b32 s9, s3, 2
s_add_u32 s10, s10, s9
s_lshl_b32 s10, s10, 12
s_lshl_b32 s9, s14, 6
s_add_u32 s10, s10, s9
s_add_u32 s92, s10, {WS_P3}
s_add_u32 s93, s92, 8192
""")
    spin(C_VB, 4, "vb")
    stamp_at(7)
    pv_stage(1)
    a(f"""
s_nop 6
v_fmac_f32 v128, v50, v24
v_fmac_f32 v129, v50, v40
v_fmac_f32 v128, v51, v28
v_fmac_f32 v129, v51, v44
s_nop 0
v_mov_b32_dpp v130, v128 quad_perm:[1,0,3,2] row_mask:0xf bank_mask:0xf
v_mov_b32_dpp v131, v129 quad_perm:[1,0,3,2] row_mask:0xf bank_mask:0xf
v_cvt_pk_bf16_f32 v130, v128, v130
v_cvt_pk_bf16_f32 v131, v131, v129
v_cndmask_b32 v132, v130, v131, s[42:43]
buffer_store_dwordx2 v[132:133], v160, s[52:55], s94 offen
s_mov_b64 exec, s[86:87]
buffer_store_dwordx2 v[162:163], v161, s[52:55], s95 offen
s_mov_b64 exec, -1
""")
    if w3late == 1: signal(C_S, wait_lds=False)
    stamp_at(8)
    loads = [f"buffer_load_dwordx4 v[{64+4*i}:{67+4*i}], v173, s[56:59], s11 offen offset:{512*i} sc1" for i in range(2)]
    loads += ["buffer_load_dwordx4 v[72:75], v174, s[56:59], s12 offen sc1"]
    poll(loads, [65+2*i for i in range(6)], "o", first_sleep=osleep, slp=oslp, dual=True, R=10, after_issue=((lambda: signal(C_S, wait_lds=False)) if w3late == 2 else None),
         lateB="buffer_store_dwordx2 v[132:133], v160, s[44:47], s94 offen sc1\ns_mov_b64 exec, s[86:87]\nbuffer_store_dwordx2 v[162:163], v161, s[44:47], s95 offen sc1")
    stamp_at(9)
    a(f"""
v_max_f32 v16, v72, v74
v_lshlrev_b32 v40, 16, v64
v_mov_b32 v17, v16
v_and_b32 v41, 0xffff0000, v64
v_lshlrev_b32 v42, 16, v66
v_permlane32_swap_b32 v16, v17
v_and_b32 v43, 0xffff0000, v66
v_max_f32 v16, v16, v17
v_lshlrev_b32 v44, 16, v68
v_mov_b32 v17, v16
v_and_b32 v45, 0xffff0000, v68
v_lshlrev_b32 v46, 16, v70
v_permlane16_swap_b32 v16, v17
v_and_b32 v47, 0xffff0000, v70
v_max_f32 v16, v16, v17
v_sub_f32 v72, v72, v16
v_sub_f32 v74, v74, v16
v_exp_f32 v72, v72
v_exp_f32 v74, v74
v_mov_b32 v29, s8
v_mul_f32 v18, v72, v40
v_mul_f32 v19, v72, v41
v_mul_f32 v20, v72, v42
v_mul_f32 v21, v72, v43
v_add_f32 v16, v72, v74
v_fmac_f32 v18, v74, v44
v_fmac_f32 v19, v74, v45
v_fmac_f32 v20, v74, v46
v_fmac_f32 v21, v74, v47
v_mov_b32 v17, v16
v_mov_b32 v24, v18
v_mov_b32 v25, v19
v_mov_b32 v26, v20
v_mov_b32 v27, v21
v_permlane32_swap_b32 v16, v17
v_permlane32_swap_b32 v18, v24
v_permlane32_swap_b32 v19, v25
v_permlane32_swap_b32 v20, v26
v_permlane32_swap_b32 v21, v27
v_add_f32 v16, v16, v17
v_add_f32 v18, v18, v24
v_add_f32 v19, v19, v25
v_add_f32 v20, v20, v26
v_add_f32 v21, v21, v27
v_mov_b32 v17, v16
v_mov_b32 v24, v18
v_mov_b32 v25, v19
v_mov_b32 v26, v20
v_mov_b32 v27, v21
v_permlane16_swap_b32 v16, v17
v_permlane16_swap_b32 v18, v24
v_permlane16_swap_b32 v19, v25
v_permlane16_swap_b32 v20, v26
v_permlane16_swap_b32 v21, v27
v_add_f32 v16, v16, v17
v_add_f32 v18, v18, v24
v_rcp_f32 v16, v16
v_add_f32 v19, v19, v25
v_add_f32 v20, v20, v26
v_add_f32 v21, v21, v27
v_mul_f32 v18, v18, v16
v_mul_f32 v19, v19, v16
v_mul_f32 v20, v20, v16
v_mul_f32 v21, v21, v16
v_cvt_pk_bf16_f32 v18, v18, v19
v_cvt_pk_bf16_f32 v19, v20, v21
ds_write_b64 v175, v[18:19]
v_mov_b32 v31, s8
s_waitcnt lgkmcnt(0)
s_barrier
""")
    stamp_at(10)
    a(f"""
ds_read_b128 v[64:67], v9
ds_read_b128 v[68:71], v9 offset:256
ds_read_b128 v[72:75], v9 offset:{XH-XO}
ds_read_b32 v11, v10
""")
    for u in range(2):
        for s in range(3):
            for hf in range(2):
                r = 96 + (u*3+s)*4 + 2*hf
                a(f"ds_read_b64_tr_b16 v[{r}:{r+1}], v{6+u} offset:{s*8192+hf*4096}")
    a("s_waitcnt lgkmcnt(6)")
    for u in range(2):
        b0 = 16 + 24*u
        r = 96 + u*12
        if u == 1: a("s_waitcnt lgkmcnt(0)")
        a(f"v_mfma_f32_16x16x32_bf16 v[{b0+4}:{b0+7}], v[72:75], v[{r+8}:{r+11}], 0")
        a(f"v_mfma_f32_16x16x32_bf16 v[{b0}:{b0+3}], v[64:67], v[{r}:{r+3}], 0")
        a(f"v_mfma_f32_16x16x32_bf16 v[{b0}:{b0+3}], v[68:71], v[{r+4}:{r+7}], v[{b0}:{b0+3}]")
    a(f"""
v_sub_f32 v12, 1.0, v11
s_nop 3
v_mul_f32 v20, v20, v12
v_fma_f32 v28, v16, v11, v20
buffer_store_dwordx2 v[28:29], v14, s[44:47], s92 offen sc1
v_mul_f32 v44, v44, v12
s_nop 0
v_fma_f32 v30, v40, v11, v44
buffer_store_dwordx2 v[30:31], v14, s[44:47], s93 offen sc1
""")
    stamp_at(11)
    a(f"""
s_cmp_lg_u32 s3, 0
s_cbranch_scc1 L_FIN
s_lshl_b32 s10, s2, 12
s_add_u32 s10, s10, {WS_P3}
v_lshlrev_b32 v8, 4, v0
s_mov_b32 s48, s36
s_mov_b32 s49, s37
s_mov_b32 s50, 4096
""")
    loads = [f"buffer_load_dwordx4 v[{64+4*i}:{67+4*i}], v8, s[44:47], s10 offen offset:{1024*i} sc1" for i in range(4)]
    poll(loads, [65+2*i for i in range(8)], "y", slp=yslp, first_sleep=ysleep)
    stamp_at(12)
    a(f"""
v_add_f32 v16, v64, v68
v_add_f32 v17, v66, v70
v_add_f32 v18, v72, v76
v_add_f32 v19, v74, v78
v_add_f32 v16, v16, v18
v_add_f32 v17, v17, v19
v_lshlrev_b32 v8, 2, v0
s_lshl_b32 s10, s2, 4
v_add_f32_dpp v16, v16, v16 row_ror:4 row_mask:0xf bank_mask:0xf
v_add_f32_dpp v17, v17, v17 row_ror:4 row_mask:0xf bank_mask:0xf
s_nop 1
v_add_f32_dpp v16, v16, v16 row_ror:8 row_mask:0xf bank_mask:0xf
v_add_f32_dpp v17, v17, v17 row_ror:8 row_mask:0xf bank_mask:0xf
v_mov_b32 v18, v16
v_mov_b32 v19, v17
s_nop 1
v_permlane16_swap_b32 v16, v18
v_permlane16_swap_b32 v17, v19
v_add_f32 v16, v16, v18
v_add_f32 v17, v17, v19
v_mov_b32 v18, v16
v_mov_b32 v19, v17
s_nop 1
v_permlane32_swap_b32 v16, v18
v_permlane32_swap_b32 v17, v19
v_add_f32 v16, v16, v18
v_add_f32 v17, v17, v19
v_cvt_pk_bf16_f32 v16, v16, v17
s_mov_b64 exec, 15
buffer_store_dword v16, v8, s[48:51], s10 offen sc1
s_cmp_lg_u32 s2, 0
s_cbranch_scc1 L_FIN
s_mov_b64 exec, 1
v_add_u32 v5, 1, v5
buffer_store_dword v5, v4, s[44:47], 0 offen sc1
s_branch L_FIN
""")
    a.label("L_GB")
    a(f"""
s_sub_u32 s9, s3, 4
s_lshl_b32 s10, s6, 3
s_add_u32 s10, s10, s4
s_lshl_b32 s10, s10, 21
s_lshl_b32 s11, s7, 16
s_add_u32 s13, s10, s11
s_add_u32 s13, s13, {6144*256}
s_mov_b32 s50, 65536
s_mov_b32 s54, 65536
s_mul_i32 s10, s2, {rot}
s_add_u32 s10, s10, s9
s_and_b32 s10, s10, 63
s_and_b32 s11, s10, 3
s_lshl_b32 s11, s11, 2
v_add_u32 v6, s11, v2
v_xor_b32 v6, v6, v1
v_lshlrev_b32 v6, 4, v6
v_lshl_add_u32 v6, v2, 8, v6
s_and_b32 s11, s10, 1
s_lshl_b32 s11, s11, 2
v_add_u32 v7, s11, v2
v_lshlrev_b32 v7, 1, v7
v_xor_b32 v7, v7, v1
v_lshlrev_b32 v7, 4, v7
v_lshl_add_u32 v7, v2, 8, v7
v_mov_b32 v8, 0
v_mov_b32 v9, 0
v_mov_b32 v10, 0
v_mov_b32 v11, 0
ds_write_b128 v62, v[8:11]
ds_write_b128 v62, v[8:11] offset:16
v_mov_b32 v60, {C_QK}
s_mov_b32 s12, 16
s_waitcnt lgkmcnt(0)
""")
    stamp_at(14)
    a(f"""
s_add_u32 s48, s18, s13
s_addc_u32 s49, s19, 0
s_add_u32 s52, s20, s13
s_addc_u32 s53, s21, 0
{"s_barrier" if pre == 0 else ""}
L_KL:
s_lshl_b32 s11, s10, 10
s_mov_b32 m0, s11
s_add_u32 s10, s10, 4
s_and_b32 s10, s10, 63
s_waitcnt vmcnt({dK-1})
buffer_load_dwordx4 v6, s[48:51], s11 offen{NT} lds
s_sub_u32 s12, s12, 1
{"" if pre == 0 else f"s_cmp_lg_u32 s12, {16-pre}" + chr(10) + "s_cbranch_scc1 L_KL2" + chr(10) + "s_barrier" + chr(10) + "L_KL2:"}
s_cmp_lg_u32 s12, 0
s_cbranch_scc1 L_KL
s_and_b32 s10, s10, 31
s_mov_b32 s13, 0
""")
    stamp_at(2)
    a(f"""
s_mov_b32 s12, 0
s_mov_b32 s15, {dV-1}
s_lshl_b32 s14, s4, 2
s_add_u32 s14, s14, s6
s_lshl_b32 s14, s14, 1
s_bfe_u32 s11, s5, 0x10002
s_add_u32 s14, s14, s11
s_and_b32 s11, s5, 3
s_lshl_b32 s11, s11, 8
s_lshl_b32 s16, s14, 16
s_add_u32 s16, s16, s11
s_add_u32 s48, s24, s16
s_addc_u32 s49, s25, 0
s_sub_u32 s50, 4194304, s16
s_mul_i32 s16, s14, {28*1024}
s_add_u32 s16, s16, s11
s_add_u32 s56, s32, s16
s_addc_u32 s57, s33, 0
s_sub_u32 s58, 1835008, s16
s_mov_b32 s59, 0x00020000
v_lshlrev_b32 v8, 1, v2
v_xor_b32 v8, v8, v1
v_lshlrev_b32 v8, 4, v8
v_lshl_add_u32 v8, v2, 10, v8
v_xor_b32 v9, 0x80, v8
L_VL:
s_cmp_lg_u32 s12, 8
s_cbranch_scc1 L_V1
""")
    spin(C_P1, 4, "p1")
    a(f"""
s_mov_b32 s13, 32768
L_V1:
s_lshl_b32 s11, s10, 10
s_add_u32 s11, s11, s13
s_add_u32 m0, s11, {LV}
s_add_u32 s10, s10, 4
s_and_b32 s10, s10, 31
{f"s_waitcnt vmcnt({dV-1})" if dVB is None else f"s_cmp_lt_u32 s12, 8" + chr(10) + "s_cbranch_scc1 L_Va" + chr(10) + f"s_waitcnt vmcnt({dVB-1})" + chr(10) + "s_branch L_Vb" + chr(10) + "L_Va:" + chr(10) + f"s_waitcnt vmcnt({dV-1})" + chr(10) + "L_Vb:"}
s_cmp_lg_u32 s12, s15
s_cbranch_scc1 L_V2
s_mov_b64 exec, 1
ds_add_u32 v60, v63
s_mov_b64 exec, -1
v_add_u32 v60, 4, v60
s_mov_b32 s15, {(dV if dVB is None else dVB)+7}
s_cmp_eq_u32 s12, {(dV if dVB is None else dVB)+7}
s_cselect_b32 s15, 99, s15
L_V2:
buffer_load_dwordx4 v7, s[52:55], s11 offen{NT} lds
s_add_u32 s12, s12, 1
s_cmp_lt_u32 s12, 16
s_cbranch_scc1 L_VL
""")
    stamp_at(3)
    a(f"""
s_lshl_b32 s10, s9, 14
s_lshl_b32 s11, s9, 12
s_add_u32 s11, s11, {W3}
""")
    k = 0
    dWw = dW if dW is not None else dV
    done = {"VA": (dV if dVB is None else dVB)+7 <= 15, "VB": False}
    if not done["VA"]:
        a("s_waitcnt vmcnt(8)"); signal(C_VA, wait_lds=False); done["VA"] = True
    if w3late:
        a("s_waitcnt vmcnt(0)"); signal(C_VB, wait_lds=False); done["VB"] = True
        spin(C_S, 4, "w3go")
        dWw = 16
    def w3step(srd, vreg, soff_line, m0_line):
        nonlocal k
        a(m0_line); a(soff_line)
        a(f"s_waitcnt vmcnt({dWw-1})")
        if not done["VA"] and dWw-1 <= 8 + k: signal(C_VA, wait_lds=False); done["VA"] = True
        if not done["VB"] and dWw-1 <= k: signal(C_VB, wait_lds=False); done["VB"] = True
        a(f"buffer_load_dwordx4 v{vreg}, {srd}, s12 offen{NT} lds")
        k += 1
    for ii in range(4):
        w3step("s[48:51]", 8+(ii&1), f"s_add_u32 s12, s10, {ii*4096}", f"s_add_u32 m0, s11, {ii*1024}")
    a(f"""
s_lshl_b32 s10, s9, 13
s_lshl_b32 s11, s9, 11
s_add_u32 s11, s11, {W3+16384}
""")
    for ii in range(2):
        w3step("s[56:59]", 8+(ii&1), f"s_add_u32 s12, s10, {ii*4096}\ns_min_u32 s12, s12, {6*4096}", f"s_add_u32 m0, s11, {ii*1024}")
    if not done["VA"]:
        a("s_waitcnt vmcnt(14)"); signal(C_VA, wait_lds=False)
    if not done["VB"]:
        a("s_waitcnt vmcnt(6)"); signal(C_VB, wait_lds=False)
    stamp_at(4)
    a("s_waitcnt vmcnt(0)")
    stamp_at(10)
    a.label("L_FIN")
    if stamps:
        a("s_mov_b64 exec, -1")
        stamp_at(13)
        a(f"""
s_waitcnt lgkmcnt(0) vmcnt(0)
s_mov_b32 s44, s40
s_mov_b32 s45, s41
s_mov_b32 s46, {WS_STAMP+256*8*64}
s_mov_b32 s47, 0x00020000
s_lshl_b32 s10, s2, 3
s_add_u32 s10, s10, s3
s_lshl_b32 s10, s10, 6
s_add_u32 s10, s10, {WS_STAMP}
v_mov_b32 v4, 0
s_mov_b64 exec, 1
""")
        for i in range(14):
            a(f"v_mov_b32 v6, s{64+2*i}")
            a(f"buffer_store_dword v6, v4, s[44:47], s10 offen offset:{4*i} sc1")
    a("L_end:")
    a("s_endpgm")
    return a.text()

HEADER = open("gated_mix__sliding_block_cached__glu_gated_swiglu__decode.s.ref").read().split("; Override launch geometry")[0]

def full(**kw):
    return wrap(gen(**kw), 256, 512, 163840, vgpr=176, sgpr=102, header=HEADER)

if __name__ == "__main__":
    open("k11.s", "w").write(full())
    open("k11_diag.s", "w").write(full(stamps=True))
    V = {"b": {}, "l1": dict(w3late=1), "l2": dict(w3late=2), "l1o6": dict(w3late=1, osleep=6), "l2o6": dict(w3late=2, osleep=6), "l1o0": dict(w3late=1, osleep=0)}
    for nm, kw in V.items():
        open(f"k11_diag_{nm}.s", "w").write(full(stamps=True, **kw))
```

```python
import sys
from gen_common import *

WS_P1  = 0x1000
WS_P2  = 0x90000
WS_P3  = 0x110000
WS_P2L = 0x210000
WS_END = 0x220000
WS_STAMP = 0x300000
AOFF = 0x400000
LK, LV, LVB, LC = 0, 65536, 98304, 131072
W3 = LC
S0 = LC + 24576
C_P1, C_QK, C_VA, C_VB, C_P, C_S = [S0 + 4*i for i in range(6)]
GG, ML, QQ, XO, XH, PP = S0+32, S0+128, S0+512, S0+6656, S0+7168, S0+2560
PART = S0 + 1536
HASH = 0x9E3779B1
SCALE_LOG2E = 0.08838834764831845 * 1.4426950408889634
LOG2E = 1.4426950408889634

def f32hex(x):
    import struct
    return "0x%08x" % struct.unpack("<I", struct.pack("<f", x))[0]

def gen(stamps=False, dK=5, dV=7, rot=5, poll_limit=20000, pre=1, spin_sleep=1,
        qsleep=2, qslp=1, osleep=3, oslp=1, ysleep=24, yslp=1, hslp=4, bper=16, dW=None, dVB=None, w3late=0, jrot=0, preS=4, vbslp=1, p3full=True):
    a = Asm()
    NT = " nt"
    if p3full:
        P3ADDR = f"""v_lshlrev_b32 v14, 18, v2
v_lshl_add_u32 v14, v1, 3, v14
s_and_b32 s9, s5, 3
s_lshl_b32 s10, s9, 3
s_lshl_b32 s9, s3, 1
s_add_u32 s10, s10, s9
s_lshl_b32 s10, s10, 13
s_lshl_b32 s9, s14, 7
s_add_u32 s10, s10, s9
s_add_u32 s92, s10, {WS_P3}
s_add_u32 s93, s92, 8192"""
    else:
        P3ADDR = f"""v_lshlrev_b32 v14, 18, v2
v_lshrrev_b32 v15, 3, v1
v_lshl_add_u32 v14, v15, 12, v14
v_and_b32 v15, 7, v1
v_lshl_add_u32 v14, v15, 3, v14
s_and_b32 s9, s5, 3
s_lshl_b32 s10, s9, 4
s_lshl_b32 s9, s3, 2
s_add_u32 s10, s10, s9
s_lshl_b32 s10, s10, 12
s_lshl_b32 s9, s14, 6
s_add_u32 s10, s10, s9
s_add_u32 s92, s10, {WS_P3}
s_add_u32 s93, s92, 8192"""
    def stamp_at(i):
        if stamps:
            a(f"s_memrealtime s[{64+2*i}:{65+2*i}]")
    def exec_n4():
        a("s_mov_b32 exec_lo, 0x000F000F\ns_mov_b32 exec_hi, 0x000F000F")
    def exec_all():
        a("s_mov_b64 exec, -1")
    def poll(loads, tags, name, first_sleep=0, mask=None, preissued=False, slp=1, dual=False, lateB=None, R=8, cond=None, after_issue=None):
        L = a.newlabel("Lpoll_"+name); D = a.newlabel("Ldone_"+name); C2 = a.newlabel("Lchk_"+name)
        N1 = a.newlabel("Lnb_"+name); N2 = a.newlabel("Lnb_"+name)
        lim = poll_limit - (poll_limit % bper) + bper - 1
        a(f"s_mov_b32 s62, {lim}")
        if first_sleep: a(f"s_sleep {first_sleep}")
        if mask: a(mask)
        if preissued:
            a(f"s_branch {C2}")
        if after_issue:
            if dual:
                a("s_mov_b32 s56, s98")
                a("s_mov_b32 s57, s99")
            for ln in loads: a(ln)
            after_issue()
            a(f"s_branch {C2}")
        a.label(L)
        if lateB:
            a(f"s_cmp_lg_u32 s62, {lim-R}")
            a(f"s_cbranch_scc1 {N1}")
            if cond:
                a(f"s_cmp_eq_u32 {cond}, 0")
                a(f"s_cbranch_scc1 {N1}")
            a("s_mov_b64 s[60:61], exec")
            a("s_mov_b64 exec, -1")
            a(lateB)
            a("s_mov_b64 exec, s[60:61]")
            a.label(N1)
        if dual:
            a(f"s_and_b32 s63, s62, {bper-1}")
            a("s_cselect_b32 s56, s98, s40")
            a("s_cselect_b32 s57, s99, s41")
        for ln in loads: a(ln)
        a.label(C2)
        a("s_waitcnt vmcnt(0)")
        for i, t in enumerate(tags):
            if i == 0: a(f"v_cmp_ne_u32 vcc, s8, v{t}")
            else:
                a(f"v_cmp_ne_u32 s[60:61], s8, v{t}")
                a("s_or_b64 vcc, vcc, s[60:61]")
        a("s_mov_b64 exec, vcc")
        a(f"s_cbranch_execz {D}")
        a("s_sub_u32 s62, s62, 1")
        a(f"s_cbranch_scc1 {D}")
        if slp: a(f"s_sleep {slp}")
        a(f"s_branch {L}")
        a.label(D)
        a("s_mov_b64 exec, -1")
        if lateB:
            a(f"s_cmp_le_u32 s62, {lim-R}")
            a(f"s_cbranch_scc1 {N2}")
            if cond:
                a(f"s_cmp_eq_u32 {cond}, 0")
                a(f"s_cbranch_scc1 {N2}")
            a(lateB)
            a("s_mov_b64 exec, -1")
            a.label(N2)
    def signal(cnt, wait_lds=True):
        if wait_lds: a("s_waitcnt lgkmcnt(0)")
        a("s_mov_b64 exec, 1")
        a(f"ds_add_u32 v62, v63 offset:{cnt-S0}")
        a("s_mov_b64 exec, -1")
    def spin(cnt, target, name, slp=None):
        L = a.newlabel("Lspin_"+name); D = a.newlabel("Lsd_"+name)
        a(f"s_mov_b32 s62, {poll_limit*8}")
        a.label(L)
        a(f"ds_read_b32 v61, v62 offset:{cnt-S0}")
        a("s_waitcnt lgkmcnt(0)")
        a("v_readfirstlane_b32 s63, v61")
        a(f"s_cmp_ge_u32 s63, {target}")
        a(f"s_cbranch_scc1 {D}")
        a("s_sub_u32 s62, s62, 1")
        a(f"s_cbranch_scc1 {D}")
        sl = spin_sleep if slp is None else slp
        if sl: a(f"s_sleep {sl}")
        a(f"s_branch {L}")
        a.label(D)

    a(f"""
s_cmp_ge_u32 s2, 256
s_cbranch_scc1 L_end
""")
    stamp_at(0)
    a(f"""
s_load_dwordx16 s[16:31], s[0:1], 0
s_load_dwordx8 s[32:39], s[0:1], 64
s_load_dwordx2 s[40:41], s[0:1], 96
v_lshrrev_b32 v1, 6, v0
v_and_b32 v0, 63, v0
v_readfirstlane_b32 s3, v1
v_and_b32 v1, 15, v0
v_lshrrev_b32 v2, 4, v0
v_and_b32 v3, 3, v0
v_lshrrev_b32 v58, 2, v1
s_and_b32 s4, s2, 7
s_lshr_b32 s5, s2, 3
s_lshr_b32 s6, s5, 3
s_and_b32 s7, s5, 7
v_mov_b32 v62, {S0}
v_mov_b32 v63, 1
s_mov_b32 s51, 0x00020000
s_mov_b32 s55, 0x00020000
s_cmp_ge_u32 s3, 4
s_cbranch_scc1 L_GB
; ================= group A =================
s_add_u32 s10, s5, {jrot}
s_and_b32 s10, s10, 15
s_lshl_b32 s9, s4, 4
s_add_u32 s9, s9, s10
s_mul_i32 s10, s4, 14
s_add_u32 s10, s10, s5
s_add_u32 s10, s10, 112
s_cmp_ge_u32 s5, 16
s_cselect_b32 s9, s10, s9
s_movk_i32 s12, 8192
s_movk_i32 s13, 3584
s_mov_b32 s14, 4194304
s_mov_b32 s15, 1835008
s_cselect_b32 s12, s13, s12
s_cselect_b32 s14, s15, s14
s_cselect_b32 s10, 128, 0
s_cmp_ge_u32 s9, 184
s_cselect_b32 s10, 184, s10
s_sub_u32 s10, s9, s10
s_and_b32 s11, s10, 1
s_lshr_b32 s10, s10, 1
s_lshl_b32 s10, s10, 7
s_lshl_b32 s13, s12, 8
s_mul_i32 s13, s13, s11
s_add_u32 s10, s10, s13
s_sub_u32 s50, s14, s10
s_cmp_ge_u32 s5, 30
s_cselect_b32 s50, 0, s50
s_cselect_b32 s9, 255, s9
v_lshrrev_b32 v6, 3, v0
v_mul_lo_u32 v6, v6, s12
v_and_b32 v8, 7, v0
v_bfe_u32 v9, v0, 4, 1
v_lshlrev_b32 v9, 1, v9
v_xor_b32 v8, v8, v9
v_lshl_add_u32 v6, v8, 4, v6
v_xor_b32 v7, 64, v6
s_lshl_b32 s15, s12, 6
s_mul_i32 s15, s15, s3
s_lshl_b32 s13, s12, 3
s_lshl_b32 s14, s3, 13
s_add_u32 s14, s14, {LVB}
s_mov_b32 m0, s14
s_add_u32 s14, s14, 8192
v_lshlrev_b32 v8, 10, v3
v_lshl_add_u32 v8, v2, 4, v8
v_lshlrev_b32 v9, 4, v2
v_mov_b32 v4, 0
v_lshlrev_b32 v172, 4, v0
s_lshl_b32 s60, s11, 9
s_lshl_b32 s61, s3, 7
s_add_u32 s60, s60, s61
s_lshl_b32 s61, s3, 8
s_mov_b32 s46, {WS_END}
s_mov_b32 s47, 0x00020000
s_mov_b32 s54, 4096
s_mov_b32 s58, 1024
s_mov_b32 s59, 0x00020000
s_waitcnt lgkmcnt(0)
""")
    stamp_at(14)
    a(f"""
s_mov_b32 s44, s40
s_mov_b32 s45, s41
s_mov_b32 s52, s16
s_mov_b32 s53, s17
s_mov_b32 s56, s34
s_mov_b32 s57, s35
buffer_load_dword v5, v4, s[44:47], 0 offen sc1
""")
    exec_n4()
    for s in range(2):
        a(f"buffer_load_dwordx4 v[{64+4*s}:{67+4*s}], v8, s[52:55], s60 offen offset:{64*s}")
    for s in range(4):
        a(f"buffer_load_dwordx4 v[{72+4*s}:{75+4*s}], v8, s[52:55], s61 offen offset:{64*s}")
    a("s_mov_b32 exec_lo, 0x00010001\ns_mov_b32 exec_hi, 0x00010001")
    for s in range(4):
        a(f"buffer_load_dwordx4 v[{88+4*s}:{91+4*s}], v9, s[56:59], s61 offen offset:{64*s}")
    exec_all()
    a(f"""
s_cmp_ge_u32 s9, 128
s_cselect_b32 s48, s28, s22
s_cselect_b32 s49, s29, s23
s_cmp_ge_u32 s9, 184
s_cselect_b32 s48, s30, s48
s_cselect_b32 s49, s31, s49
s_add_u32 s48, s48, s10
s_addc_u32 s49, s49, 0
L_W1:
buffer_load_dwordx4 v6, s[48:51], s15 offen{NT} lds
s_add_u32 s15, s15, s13
s_add_u32 m0, m0, 1024
s_nop 0
buffer_load_dwordx4 v7, s[48:51], s15 offen{NT} lds
s_add_u32 s15, s15, s13
s_add_u32 m0, m0, 1024
s_cmp_lt_u32 m0, s14
s_cbranch_scc1 L_W1
s_barrier
""")
    stamp_at(1)
    a(f"""
v_lshl_add_u32 v9, v2, 3, v58
v_lshlrev_b32 v9, 7, v9
v_bfe_u32 v10, v1, 3, 1
v_and_b32 v11, 1, v2
v_lshl_add_u32 v10, v11, 1, v10
v_lshl_add_u32 v9, v10, 5, v9
v_lshl_add_u32 v9, v3, 3, v9
s_lshl_b32 s14, s3, 13
s_add_u32 s14, s14, {LVB}
v_add_u32 v10, s14, v9
v_xor_b32 v11, 32, v10
v_xor_b32 v12, 64, v10
v_xor_b32 v13, 96, v10
v_lshlrev_b32 v8, 6, v2
v_lshl_add_u32 v8, v1, 4, v8
s_mul_i32 s10, s3, 1280
s_add_u32 s10, s10, {PART}
v_add_u32 v8, s10, v8
s_add_u32 s98, s40, {AOFF}
s_addc_u32 s99, s41, 0
s_mov_b32 s52, s98
s_mov_b32 s53, s99
s_mov_b32 s54, {WS_END}
s_mov_b32 s58, {WS_END}
s_mov_b32 s101, 0
s_lshl_b32 s100, s9, 11
s_add_u32 s100, s100, {WS_P1}
s_waitcnt vmcnt(0)
""")
    stamp_at(2)
    for s in range(2):
        for ct in range(4):
            for hf in range(2):
                r = 104 + (s*4+ct)*4 + 2*hf
                a(f"ds_read_b64_tr_b16 v[{r}:{r+1}], v{10+ct} offset:{s*4096+hf*512}")
    for s in range(4):
        c = "0" if s == 0 else "v[32:35]"
        a(f"v_mfma_f32_16x16x32_bf16 v[32:35], v[{88+4*s}:{91+4*s}], v[{72+4*s}:{75+4*s}], {c}")
    a(f"v_readfirstlane_b32 s8, v5\ns_add_u32 s8, s8, 1\ns_mul_i32 s8, s8, {HASH:#x}")
    for s in range(2):
        for ct in range(4):
            c = "0" if s == 0 else f"v[{16+4*ct}:{19+4*ct}]"
            r = 104 + (s*4+ct)*4
            if ct == 0: a(f"s_waitcnt lgkmcnt({8 if s == 0 else 0})")
            a(f"v_mfma_f32_16x16x32_bf16 v[{16+4*ct}:{19+4*ct}], v[{r}:{r+3}], v[{64+4*s}:{67+4*s}], {c}")
    a("s_nop 5")
    exec_n4()
    for t in range(5):
        a(f"ds_write_b128 v8, v[{16+4*t}:{19+4*t}] offset:{256*t}")
    a(f"""
s_mov_b64 exec, 1
s_waitcnt lgkmcnt(0)
ds_add_rtn_u32 v11, v62, v63
s_mov_b64 exec, -1
v_bfe_u32 v8, v0, 3, 2
v_lshlrev_b32 v8, 8, v8
v_bfe_u32 v10, v0, 1, 2
v_lshl_add_u32 v8, v10, 6, v8
v_lshrrev_b32 v10, 5, v0
v_lshl_add_u32 v8, v10, 4, v8
v_and_b32 v10, 1, v0
v_lshl_add_u32 v8, v10, 3, v8
v_add_u32 v8, {PART}, v8
v_lshlrev_b32 v9, 4, v3
v_add_u32 v9, {PART+1024}, v9
v_mov_b32 v165, s8
v_mov_b32 v167, s8
v_mov_b32 v169, s8
v_mov_b32 v171, s8
s_waitcnt lgkmcnt(0)
v_readfirstlane_b32 s10, v11
s_cmp_lg_u32 s10, 3
s_cbranch_scc1 L_QP
""")
    for k in range(2):
        for w in range(4):
            r = 16 + (k*4+w)*2
            a(f"ds_read_b64 v[{r}:{r+1}], v8 offset:{1280*w+32*k}")
    for w in range(4):
        a(f"ds_read_b32 v{32+w}, v9 offset:{1280*w}")
    a(f"""
s_waitcnt lgkmcnt(4)
v_add_f32 v16, v16, v18
v_add_f32 v17, v17, v19
v_add_f32 v20, v20, v22
v_add_f32 v21, v21, v23
v_add_f32 v24, v24, v26
v_add_f32 v25, v25, v27
v_add_f32 v28, v28, v30
v_add_f32 v29, v29, v31
v_add_f32 v164, v16, v20
v_add_f32 v166, v17, v21
v_add_f32 v168, v24, v28
v_add_f32 v170, v25, v29
s_cmp_ge_u32 s9, 128
s_cbranch_scc1 L_NOA1
s_mov_b32 s101, 1
buffer_store_dwordx4 v[164:167], v172, s[52:55], s100 offen
buffer_store_dwordx4 v[168:171], v172, s[52:55], s100 offen offset:1024
s_branch L_NOA2
L_NOA1:
buffer_store_dwordx4 v[164:167], v172, s[44:47], s100 offen sc1
buffer_store_dwordx4 v[168:171], v172, s[44:47], s100 offen offset:1024 sc1
L_NOA2:
s_waitcnt lgkmcnt(0)
v_add_f32 v32, v32, v33
v_add_f32 v34, v34, v35
v_add_f32 v32, v32, v34
v_mul_f32 v32, {f32hex(-LOG2E)}, v32
v_exp_f32 v32, v32
v_lshlrev_b32 v9, 2, v0
v_add_f32 v32, 1.0, v32
v_rcp_f32 v32, v32
v_add_u32 v9, {GG}, v9
s_mov_b64 exec, 15
ds_write_b32 v9, v32
s_mov_b64 exec, -1
L_QP:
""")
    stamp_at(3)
    a(f"""
v_lshrrev_b32 v9, 5, v0
v_lshlrev_b32 v9, 12, v9
v_and_b32 v10, 31, v0
v_lshl_add_u32 v9, v10, 4, v9
s_lshl_b32 s10, s4, 4
s_lshl_b32 s11, s3, 2
s_add_u32 s10, s10, s11
s_lshl_b32 s10, s10, 11
s_lshl_b32 s11, s6, 9
s_add_u32 s10, s10, s11
s_add_u32 s10, s10, {WS_P1}
""")
    poll(["buffer_load_dwordx4 v[24:27], v9, s[56:59], s10 offen sc1",
          "buffer_load_dwordx4 v[28:31], v9, s[56:59], s10 offen offset:2048 sc1"], [25, 27, 29, 31], "q",
         first_sleep=qsleep, slp=qslp, dual=True, cond="s101", R=3,
         lateB="buffer_store_dwordx4 v[164:167], v172, s[44:47], s100 offen sc1\nbuffer_store_dwordx4 v[168:171], v172, s[44:47], s100 offen offset:1024 sc1")
    a(f"""
s_lshl_b32 s10, s3, 8
s_add_u32 s10, s10, {QQ}
v_add_f32 v24, v24, v28
v_add_f32 v26, v26, v30
v_lshlrev_b32 v9, 2, v0
v_add_u32 v9, s10, v9
v_cvt_pk_bf16_f32 v24, v24, v26
ds_write_b32 v9, v24
""")
    signal(C_QK)
    stamp_at(4)
    a(f"""
v_xor_b32 v8, v2, v1
s_lshl_b32 s10, s3, 14
v_lshl_add_u32 v9, v1, 8, s10
v_lshl_add_u32 v10, v8, 4, v9
v_xor_b32 v11, 64, v10
v_xor_b32 v12, 128, v10
v_xor_b32 v13, 192, v10
v_lshlrev_b32 v14, 8, v58
v_lshl_add_u32 v14, v2, 4, v14
v_add_u32 v14, {QQ}, v14
s_mov_b32 s12, {f32hex(SCALE_LOG2E)}
v_lshlrev_b32 v36, 6, v2
v_lshl_add_u32 v36, v58, 4, v36
s_lshl_b32 s11, s3, 9
s_add_u32 s11, s11, {PP}
v_add_u32 v37, s11, v36
v_lshlrev_b32 v38, 5, v58
s_lshl_b32 s11, s3, 2
s_add_u32 s11, s11, {ML}
v_add_u32 v39, s11, v38
s_lshl_b32 s13, s4, 2
s_add_u32 s13, s13, s6
s_lshl_b32 s14, s13, 1
s_bfe_u32 s15, s5, 0x10002
s_add_u32 s14, s14, s15
v_min_u32 v8, 13, v1
s_mul_i32 s10, s14, 28
v_lshl_add_u32 v9, v8, 1, s10
v_lshrrev_b32 v59, 6, v9
v_lshlrev_b32 v59, 12, v59
v_and_b32 v8, 63, v9
v_lshl_add_u32 v59, v8, 3, v59
s_lshl_b32 s10, s3, 9
s_add_u32 s96, s10, {WS_P1+128*2048}
s_add_u32 s97, s10, {WS_P1+184*2048}
""")
    spin(C_QK, 8, "qk")
    stamp_at(5)
    for j in range(4):
        a(f"ds_read_b128 v[{64+4*j}:{67+4*j}], v14 offset:{64*j}")
    for tt in range(4):
        for j in range(4):
            r = 80+(tt*4+j)*4
            a(f"ds_read_b128 v[{r}:{r+3}], v{10+j} offset:{tt*4096}")
    for tt in range(4):
        a(f"s_waitcnt lgkmcnt({12-4*tt})")
        for j in range(4):
            r = 80+(tt*4+j)*4
            c = "0" if j == 0 else f"v[{16+4*tt}:{19+4*tt}]"
            a(f"v_mfma_f32_16x16x32_bf16 v[{16+4*tt}:{19+4*tt}], v[{r}:{r+3}], v[{64+4*j}:{67+4*j}], {c}")
    HL = ["buffer_load_dwordx4 v[144:147], v59, s[44:47], s96 offen sc1",
          "buffer_load_dwordx4 v[148:151], v59, s[44:47], s96 offen offset:2048 sc1",
          "buffer_load_dwordx4 v[152:155], v59, s[44:47], s97 offen sc1",
          "buffer_load_dwordx4 v[156:159], v59, s[44:47], s97 offen offset:2048 sc1"]
    a("s_mov_b64 exec, 0xffff")
    for ln in HL: a(ln)
    exec_all()
    a(f"""
v_max3_f32 v32, v16, v17, v18
v_max3_f32 v33, v19, v20, v21
v_max3_f32 v32, v32, v22, v23
v_max3_f32 v33, v33, v24, v25
v_max3_f32 v32, v32, v26, v27
v_max3_f32 v33, v33, v28, v29
v_max3_f32 v32, v32, v30, v31
v_max_f32 v32, v32, v33
v_mov_b32 v33, v32
s_nop 1
v_permlane32_swap_b32 v32, v33
v_max_f32 v32, v32, v33
v_mov_b32 v33, v32
s_nop 1
v_permlane16_swap_b32 v32, v33
v_max_f32 v32, v32, v33
v_mul_f32 v32, s12, v32
""")
    for i in range(16):
        a(f"v_fma_f32 v{16+i}, v{16+i}, s12, -v32")
    for i in range(16):
        a(f"v_exp_f32 v{16+i}, v{16+i}")
    for i in range(8):
        a(f"v_cvt_pk_bf16_f32 v{40+i}, v{16+2*i}, v{17+2*i}")
    for i in range(8):
        a(f"v_add_f32 v{16+2*i}, v{16+2*i}, v{17+2*i}")
    a(f"""
v_add_f32 v16, v16, v18
v_add_f32 v20, v20, v22
v_add_f32 v24, v24, v26
v_add_f32 v28, v28, v30
v_add_f32 v16, v16, v20
v_add_f32 v24, v24, v28
v_add_f32 v33, v16, v24
v_mov_b32 v34, v33
s_mov_b32 exec_lo, 0x11111111
s_mov_b32 exec_hi, 0x11111111
ds_write_b128 v37, v[40:43]
ds_write_b128 v37, v[44:47] offset:256
s_mov_b64 exec, -1
v_permlane32_swap_b32 v33, v34
v_add_f32 v33, v33, v34
v_mov_b32 v34, v33
s_nop 1
v_permlane16_swap_b32 v33, v34
v_add_f32 v33, v33, v34
s_mov_b64 exec, 0x1111
ds_write_b32 v39, v32
ds_write_b32 v39, v33 offset:16
s_mov_b64 exec, -1
""")
    signal(C_P)
    stamp_at(6)
    a(f"""
v_add_u32 v36, {PP}, v36
v_lshlrev_b32 v38, 5, v2
v_add_u32 v38, {ML}, v38
v_lshl_add_u32 v9, v2, 2, v58
v_and_b32 v10, 7, v9
v_lshlrev_b32 v10, 1, v10
v_lshrrev_b32 v11, 1, v3
s_lshl_b32 s10, s3, 2
v_add_u32 v11, s10, v11
v_xor_b32 v10, v10, v11
v_lshlrev_b32 v10, 4, v10
v_lshl_add_u32 v10, v9, 8, v10
v_and_b32 v11, 1, v3
v_lshl_add_u32 v10, v11, 3, v10
v_add_u32 v12, {LV}, v10
v_xor_b32 v13, 32, v12
v_add_u32 v6, {W3}, v10
v_xor_b32 v7, 32, v6
s_lshl_b32 s10, s4, 4
s_add_u32 s10, s10, s6
s_lshl_b32 s10, s10, 3
s_add_u32 s10, s10, s7
v_lshlrev_b32 v160, 14, v2
v_and_b32 v15, 1, v1
v_lshl_add_u32 v160, v15, 6, v160
v_lshrrev_b32 v15, 1, v1
v_lshl_add_u32 v160, v15, 3, v160
s_lshl_b32 s94, s10, 9
s_lshl_b32 s12, s3, 7
s_add_u32 s94, s94, s12
s_add_u32 s94, s94, {WS_P2}
v_lshlrev_b32 v161, 11, v2
v_lshl_add_u32 v161, v1, 3, v161
s_lshl_b32 s95, s10, 6
s_add_u32 s95, s95, {WS_P2L}
s_lshl_b32 s12, s3, 4
s_mov_b64 s[86:87], 0xff
s_lshl_b64 s[86:87], s[86:87], s12
s_mov_b32 s42, 0xAAAAAAAA
s_mov_b32 s43, 0xAAAAAAAA
s_lshl_b32 s10, s13, 2
s_add_u32 s10, s10, s3
s_lshl_b32 s11, s10, 12
s_lshl_b32 s12, s15, 8
s_add_u32 s11, s11, s12
s_add_u32 s11, s11, {WS_P2}
s_lshl_b32 s12, s10, 9
s_add_u32 s12, s12, {WS_P2L+56}
v_lshlrev_b32 v173, 4, v1
v_lshl_add_u32 v173, v2, 10, v173
v_lshlrev_b32 v174, 7, v2
v_lshrrev_b32 v175, 3, v1
v_lshlrev_b32 v175, 8, v175
v_lshl_add_u32 v175, v3, 4, v175
v_bfe_u32 v15, v1, 2, 1
v_lshl_add_u32 v175, v15, 3, v175
s_lshl_b32 s10, s3, 6
s_add_u32 s10, s10, {XO}
v_add_u32 v175, s10, v175
""")
    spin(C_P, 4, "p")
    for s in range(8):
        a(f"ds_read_b128 v[{64+4*s}:{67+4*s}], v36 offset:{256*s}")
    a(f"""
ds_read_b128 v[48:51], v38
ds_read_b128 v[52:55], v38 offset:16
s_waitcnt lgkmcnt(0)
v_max3_f32 v56, v48, v49, v50
v_max_f32 v56, v56, v51
v_sub_f32 v48, v48, v56
v_sub_f32 v49, v49, v56
v_sub_f32 v50, v50, v56
v_sub_f32 v51, v51, v56
v_exp_f32 v48, v48
v_exp_f32 v49, v49
v_exp_f32 v50, v50
v_exp_f32 v51, v51
s_nop 0
v_mul_f32 v57, v48, v52
v_fmac_f32 v57, v49, v53
v_fmac_f32 v57, v50, v54
v_fmac_f32 v57, v51, v55
v_rcp_f32 v55, v57
v_log_f32 v162, v57
v_mov_b32 v163, s8
v_mov_b32 v133, s8
v_mul_f32 v48, v48, v55
v_mul_f32 v49, v49, v55
v_mul_f32 v50, v50, v55
v_mul_f32 v51, v51, v55
v_add_f32 v162, v162, v56
""")
    def pv_stage(st):
        for u in range(2):
            for sl in range(4):
                s = st*4 + sl
                for hf in range(2):
                    r = 96 + (u*4+sl)*4 + 2*hf
                    a(f"ds_read_b64_tr_b16 v[{r}:{r+1}], v{12+u} offset:{s*8192+hf*4096}")
        n = 16
        for u in range(2):
            for sl in range(4):
                s = st*4 + sl
                tq = s >> 1
                r = 96 + (u*4+sl)*4
                acc = 16 + (u*4+tq)*4
                n -= 2
                a(f"s_waitcnt lgkmcnt({n})")
                c = "0" if (s & 1) == 0 else f"v[{acc}:{acc+3}]"
                a(f"v_mfma_f32_16x16x32_bf16 v[{acc}:{acc+3}], v[{64+4*s}:{67+4*s}], v[{r}:{r+3}], {c}")
    spin(C_VA, 4, "va")
    pv_stage(0)
    a("s_nop 7")
    for u in range(2):
        a(f"v_mul_f32 v{128+u}, v48, v{16+(u*4+0)*4}")
    for u in range(2):
        a(f"v_fmac_f32 v{128+u}, v49, v{16+(u*4+1)*4}")
    poll(HL, [145+2*i for i in range(8)], "h", mask="s_mov_b64 exec, 0xffff", preissued=True, slp=hslp)
    a(f"""
v_add_f32 v16, v144, v148
v_add_f32 v17, v146, v150
v_add_f32 v18, v152, v156
v_add_f32 v19, v154, v158
v_mul_f32 v20, {f32hex(-LOG2E)}, v16
v_mul_f32 v21, {f32hex(-LOG2E)}, v17
v_exp_f32 v20, v20
v_exp_f32 v21, v21
v_mul_f32 v16, v16, v18
v_add_f32 v20, 1.0, v20
v_add_f32 v21, 1.0, v21
v_rcp_f32 v20, v20
v_rcp_f32 v21, v21
v_mul_f32 v17, v17, v19
v_mul_f32 v16, v16, v20
v_mul_f32 v17, v17, v21
v_cvt_pk_bf16_f32 v16, v16, v17
v_cmp_gt_u32 vcc, 14, v1
v_bfe_u32 v23, v1, 1, 2
v_lshlrev_b32 v22, 4, v23
v_lshrrev_b32 v23, 3, v1
v_lshl_add_u32 v22, v23, 3, v22
v_and_b32 v23, 1, v1
v_lshl_add_u32 v22, v23, 2, v22
s_lshl_b32 s10, s3, 6
s_add_u32 s10, s10, {XH}
v_add_u32 v22, s10, v22
v_cndmask_b32 v16, 0, v16, vcc
s_mov_b64 exec, 0xffff
ds_write_b32 v22, v16
s_mov_b64 exec, -1
v_lshlrev_b32 v8, 6, v58
v_lshl_add_u32 v8, v2, 4, v8
v_add_u32 v9, {XO}, v8
v_lshlrev_b32 v10, 2, v2
v_add_u32 v10, {GG}, v10
{P3ADDR}
""")
    spin(C_VB, 4, "vb", slp=vbslp)
    stamp_at(7)
    pv_stage(1)
    a(f"""
s_nop 6
v_fmac_f32 v128, v50, v24
v_fmac_f32 v129, v50, v40
v_fmac_f32 v128, v51, v28
v_fmac_f32 v129, v51, v44
s_nop 0
v_mov_b32_dpp v130, v128 quad_perm:[1,0,3,2] row_mask:0xf bank_mask:0xf
v_mov_b32_dpp v131, v129 quad_perm:[1,0,3,2] row_mask:0xf bank_mask:0xf
v_cvt_pk_bf16_f32 v130, v128, v130
v_cvt_pk_bf16_f32 v131, v131, v129
v_cndmask_b32 v132, v130, v131, s[42:43]
buffer_store_dwordx2 v[132:133], v160, s[52:55], s94 offen
s_mov_b64 exec, s[86:87]
buffer_store_dwordx2 v[162:163], v161, s[52:55], s95 offen
s_mov_b64 exec, -1
""")
    if w3late == 1: signal(C_S, wait_lds=False)
    stamp_at(8)
    loads = [f"buffer_load_dwordx4 v[{64+4*i}:{67+4*i}], v173, s[56:59], s11 offen offset:{512*i} sc1" for i in range(2)]
    loads += ["buffer_load_dwordx4 v[72:75], v174, s[56:59], s12 offen sc1"]
    poll(loads, [65+2*i for i in range(6)], "o", first_sleep=osleep, slp=oslp, dual=True, R=10, after_issue=((lambda: signal(C_S, wait_lds=False)) if w3late == 2 else None),
         lateB="buffer_store_dwordx2 v[132:133], v160, s[44:47], s94 offen sc1\ns_mov_b64 exec, s[86:87]\nbuffer_store_dwordx2 v[162:163], v161, s[44:47], s95 offen sc1")
    stamp_at(9)
    a(f"""
v_max_f32 v16, v72, v74
v_lshlrev_b32 v40, 16, v64
v_mov_b32 v17, v16
v_and_b32 v41, 0xffff0000, v64
v_lshlrev_b32 v42, 16, v66
v_permlane32_swap_b32 v16, v17
v_and_b32 v43, 0xffff0000, v66
v_max_f32 v16, v16, v17
v_lshlrev_b32 v44, 16, v68
v_mov_b32 v17, v16
v_and_b32 v45, 0xffff0000, v68
v_lshlrev_b32 v46, 16, v70
v_permlane16_swap_b32 v16, v17
v_and_b32 v47, 0xffff0000, v70
v_max_f32 v16, v16, v17
v_sub_f32 v72, v72, v16
v_sub_f32 v74, v74, v16
v_exp_f32 v72, v72
v_exp_f32 v74, v74
v_mov_b32 v29, s8
v_mul_f32 v18, v72, v40
v_mul_f32 v19, v72, v41
v_mul_f32 v20, v72, v42
v_mul_f32 v21, v72, v43
v_add_f32 v16, v72, v74
v_fmac_f32 v18, v74, v44
v_fmac_f32 v19, v74, v45
v_fmac_f32 v20, v74, v46
v_fmac_f32 v21, v74, v47
v_mov_b32 v17, v16
v_mov_b32 v24, v18
v_mov_b32 v25, v19
v_mov_b32 v26, v20
v_mov_b32 v27, v21
v_permlane32_swap_b32 v16, v17
v_permlane32_swap_b32 v18, v24
v_permlane32_swap_b32 v19, v25
v_permlane32_swap_b32 v20, v26
v_permlane32_swap_b32 v21, v27
v_add_f32 v16, v16, v17
v_add_f32 v18, v18, v24
v_add_f32 v19, v19, v25
v_add_f32 v20, v20, v26
v_add_f32 v21, v21, v27
v_mov_b32 v17, v16
v_mov_b32 v24, v18
v_mov_b32 v25, v19
v_mov_b32 v26, v20
v_mov_b32 v27, v21
v_permlane16_swap_b32 v16, v17
v_permlane16_swap_b32 v18, v24
v_permlane16_swap_b32 v19, v25
v_permlane16_swap_b32 v20, v26
v_permlane16_swap_b32 v21, v27
v_add_f32 v16, v16, v17
v_add_f32 v18, v18, v24
v_rcp_f32 v16, v16
v_add_f32 v19, v19, v25
v_add_f32 v20, v20, v26
v_add_f32 v21, v21, v27
v_mul_f32 v18, v18, v16
v_mul_f32 v19, v19, v16
v_mul_f32 v20, v20, v16
v_mul_f32 v21, v21, v16
v_cvt_pk_bf16_f32 v18, v18, v19
v_cvt_pk_bf16_f32 v19, v20, v21
ds_write_b64 v175, v[18:19]
v_mov_b32 v31, s8
s_waitcnt lgkmcnt(0)
s_barrier
""")
    stamp_at(10)
    a(f"""
ds_read_b128 v[64:67], v9
ds_read_b128 v[68:71], v9 offset:256
ds_read_b128 v[72:75], v9 offset:{XH-XO}
ds_read_b32 v11, v10
""")
    for u in range(2):
        for s in range(3):
            for hf in range(2):
                r = 96 + (u*3+s)*4 + 2*hf
                a(f"ds_read_b64_tr_b16 v[{r}:{r+1}], v{6+u} offset:{s*8192+hf*4096}")
    a("s_waitcnt lgkmcnt(6)")
    for u in range(2):
        b0 = 16 + 24*u
        r = 96 + u*12
        if u == 1: a("s_waitcnt lgkmcnt(0)")
        a(f"v_mfma_f32_16x16x32_bf16 v[{b0+4}:{b0+7}], v[72:75], v[{r+8}:{r+11}], 0")
        a(f"v_mfma_f32_16x16x32_bf16 v[{b0}:{b0+3}], v[64:67], v[{r}:{r+3}], 0")
        a(f"v_mfma_f32_16x16x32_bf16 v[{b0}:{b0+3}], v[68:71], v[{r+4}:{r+7}], v[{b0}:{b0+3}]")
    a(f"""
v_sub_f32 v12, 1.0, v11
s_nop 3
v_mul_f32 v20, v20, v12
v_fma_f32 v28, v16, v11, v20
buffer_store_dwordx2 v[28:29], v14, s[44:47], s92 offen sc1
v_mul_f32 v44, v44, v12
s_nop 0
v_fma_f32 v30, v40, v11, v44
buffer_store_dwordx2 v[30:31], v14, s[44:47], s93 offen sc1
""")
    stamp_at(11)
    if p3full:
        YADDR = f"""s_lshr_b32 s10, s2, 1
s_lshl_b32 s10, s10, 13
s_and_b32 s11, s2, 1
s_lshl_b32 s11, s11, 6
s_add_u32 s10, s10, s11
s_add_u32 s10, s10, {WS_P3}
v_lshrrev_b32 v8, 2, v0
v_lshlrev_b32 v8, 7, v8
v_lshl_add_u32 v8, v3, 4, v8"""
        ystep = 2048
    else:
        YADDR = f"""s_lshl_b32 s10, s2, 12
s_add_u32 s10, s10, {WS_P3}
v_lshlrev_b32 v8, 4, v0"""
        ystep = 1024
    a(f"""
s_cmp_lg_u32 s3, 0
s_cbranch_scc1 L_FIN
{YADDR}
s_mov_b32 s48, s36
s_mov_b32 s49, s37
s_mov_b32 s50, 4096
""")
    if p3full:
        a("s_add_u32 s11, s10, 4096")
        loads = [f"buffer_load_dwordx4 v[{64+4*i}:{67+4*i}], v8, s[44:47], {'s10' if i < 2 else 's11'} offen offset:{2048*(i&1)} sc1" for i in range(4)]
    else:
        loads = [f"buffer_load_dwordx4 v[{64+4*i}:{67+4*i}], v8, s[44:47], s10 offen offset:{1024*i} sc1" for i in range(4)]
    poll(loads, [65+2*i for i in range(8)], "y", slp=yslp, first_sleep=ysleep)
    stamp_at(12)
    a(f"""
v_add_f32 v16, v64, v68
v_add_f32 v17, v66, v70
v_add_f32 v18, v72, v76
v_add_f32 v19, v74, v78
v_add_f32 v16, v16, v18
v_add_f32 v17, v17, v19
v_lshlrev_b32 v8, 2, v0
s_lshl_b32 s10, s2, 4
v_add_f32_dpp v16, v16, v16 row_ror:4 row_mask:0xf bank_mask:0xf
v_add_f32_dpp v17, v17, v17 row_ror:4 row_mask:0xf bank_mask:0xf
s_nop 1
v_add_f32_dpp v16, v16, v16 row_ror:8 row_mask:0xf bank_mask:0xf
v_add_f32_dpp v17, v17, v17 row_ror:8 row_mask:0xf bank_mask:0xf
v_mov_b32 v18, v16
v_mov_b32 v19, v17
s_nop 1
v_permlane16_swap_b32 v16, v18
v_permlane16_swap_b32 v17, v19
v_add_f32 v16, v16, v18
v_add_f32 v17, v17, v19
v_mov_b32 v18, v16
v_mov_b32 v19, v17
s_nop 1
v_permlane32_swap_b32 v16, v18
v_permlane32_swap_b32 v17, v19
v_add_f32 v16, v16, v18
v_add_f32 v17, v17, v19
v_cvt_pk_bf16_f32 v16, v16, v17
s_mov_b64 exec, 15
buffer_store_dword v16, v8, s[48:51], s10 offen sc1
s_cmp_lg_u32 s2, 0
s_cbranch_scc1 L_FIN
s_mov_b64 exec, 1
v_add_u32 v5, 1, v5
buffer_store_dword v5, v4, s[44:47], 0 offen sc1
s_branch L_FIN
""")
    a.label("L_GB")
    a(f"""
s_sub_u32 s9, s3, 4
s_lshl_b32 s10, s6, 3
s_add_u32 s10, s10, s4
s_lshl_b32 s10, s10, 21
s_lshl_b32 s11, s7, 16
s_add_u32 s13, s10, s11
s_add_u32 s13, s13, {6144*256}
s_mov_b32 s50, 65536
s_mov_b32 s54, 65536
s_mul_i32 s10, s2, {rot}
s_add_u32 s10, s10, s9
s_and_b32 s10, s10, 63
s_and_b32 s11, s10, 3
s_lshl_b32 s11, s11, 2
v_add_u32 v6, s11, v2
v_xor_b32 v6, v6, v1
v_lshlrev_b32 v6, 4, v6
v_lshl_add_u32 v6, v2, 8, v6
s_and_b32 s11, s10, 1
s_lshl_b32 s11, s11, 2
v_add_u32 v7, s11, v2
v_lshlrev_b32 v7, 1, v7
v_xor_b32 v7, v7, v1
v_lshlrev_b32 v7, 4, v7
v_lshl_add_u32 v7, v2, 8, v7
v_mov_b32 v8, 0
v_mov_b32 v9, 0
v_mov_b32 v10, 0
v_mov_b32 v11, 0
ds_write_b128 v62, v[8:11]
ds_write_b128 v62, v[8:11] offset:16
v_mov_b32 v60, {C_QK}
s_mov_b32 s12, 16
s_and_b32 s42, s5, 30
s_cmp_eq_u32 s42, 6
s_cselect_b32 s42, {16-(preS if preS is not None else pre)}, {16-pre}
s_waitcnt lgkmcnt(0)
""")
    stamp_at(14)
    a(f"""
s_add_u32 s48, s18, s13
s_addc_u32 s49, s19, 0
s_add_u32 s52, s20, s13
s_addc_u32 s53, s21, 0
{"s_barrier" if pre == 0 else ""}
L_KL:
s_lshl_b32 s11, s10, 10
s_mov_b32 m0, s11
s_add_u32 s10, s10, 4
s_and_b32 s10, s10, 63
s_waitcnt vmcnt({dK-1})
buffer_load_dwordx4 v6, s[48:51], s11 offen{NT} lds
s_sub_u32 s12, s12, 1
{"" if pre == 0 else f"s_cmp_lg_u32 s12, s42" + chr(10) + "s_cbranch_scc1 L_KL2" + chr(10) + "s_barrier" + chr(10) + "L_KL2:"}
s_cmp_lg_u32 s12, 0
s_cbranch_scc1 L_KL
s_and_b32 s10, s10, 31
s_mov_b32 s13, 0
""")
    stamp_at(2)
    a(f"""
s_mov_b32 s12, 0
s_mov_b32 s15, {dV-1}
s_lshl_b32 s14, s4, 2
s_add_u32 s14, s14, s6
s_lshl_b32 s14, s14, 1
s_bfe_u32 s11, s5, 0x10002
s_add_u32 s14, s14, s11
s_and_b32 s11, s5, 3
s_lshl_b32 s11, s11, 8
s_lshl_b32 s16, s14, 16
s_add_u32 s16, s16, s11
s_add_u32 s48, s24, s16
s_addc_u32 s49, s25, 0
s_sub_u32 s50, 4194304, s16
s_mul_i32 s16, s14, {28*1024}
s_add_u32 s16, s16, s11
s_add_u32 s56, s32, s16
s_addc_u32 s57, s33, 0
s_sub_u32 s58, 1835008, s16
s_mov_b32 s59, 0x00020000
v_lshlrev_b32 v8, 1, v2
v_xor_b32 v8, v8, v1
v_lshlrev_b32 v8, 4, v8
v_lshl_add_u32 v8, v2, 10, v8
v_xor_b32 v9, 0x80, v8
L_VL:
s_cmp_lg_u32 s12, 8
s_cbranch_scc1 L_V1
""")
    spin(C_P1, 4, "p1")
    a(f"""
s_mov_b32 s13, 32768
L_V1:
s_lshl_b32 s11, s10, 10
s_add_u32 s11, s11, s13
s_add_u32 m0, s11, {LV}
s_add_u32 s10, s10, 4
s_and_b32 s10, s10, 31
{f"s_waitcnt vmcnt({dV-1})" if dVB is None else f"s_cmp_lt_u32 s12, 8" + chr(10) + "s_cbranch_scc1 L_Va" + chr(10) + f"s_waitcnt vmcnt({dVB-1})" + chr(10) + "s_branch L_Vb" + chr(10) + "L_Va:" + chr(10) + f"s_waitcnt vmcnt({dV-1})" + chr(10) + "L_Vb:"}
s_cmp_lg_u32 s12, s15
s_cbranch_scc1 L_V2
s_mov_b64 exec, 1
ds_add_u32 v60, v63
s_mov_b64 exec, -1
v_add_u32 v60, 4, v60
s_mov_b32 s15, {(dV if dVB is None else dVB)+7}
s_cmp_eq_u32 s12, {(dV if dVB is None else dVB)+7}
s_cselect_b32 s15, 99, s15
L_V2:
buffer_load_dwordx4 v7, s[52:55], s11 offen{NT} lds
s_add_u32 s12, s12, 1
s_cmp_lt_u32 s12, 16
s_cbranch_scc1 L_VL
""")
    stamp_at(3)
    a(f"""
s_lshl_b32 s10, s9, 14
s_lshl_b32 s11, s9, 12
s_add_u32 s11, s11, {W3}
""")
    k = 0
    dWw = dW if dW is not None else dV
    done = {"VA": (dV if dVB is None else dVB)+7 <= 15, "VB": False}
    if not done["VA"]:
        a("s_waitcnt vmcnt(8)"); signal(C_VA, wait_lds=False); done["VA"] = True
    if w3late:
        a("s_waitcnt vmcnt(0)"); signal(C_VB, wait_lds=False); done["VB"] = True
        spin(C_S, 4, "w3go")
        dWw = 16
    def w3step(srd, vreg, soff_line, m0_line):
        nonlocal k
        a(m0_line); a(soff_line)
        a(f"s_waitcnt vmcnt({dWw-1})")
        if not done["VA"] and dWw-1 <= 8 + k: signal(C_VA, wait_lds=False); done["VA"] = True
        if not done["VB"] and dWw-1 <= k: signal(C_VB, wait_lds=False); done["VB"] = True
        a(f"buffer_load_dwordx4 v{vreg}, {srd}, s12 offen{NT} lds")
        k += 1
    for ii in range(4):
        w3step("s[48:51]", 8+(ii&1), f"s_add_u32 s12, s10, {ii*4096}", f"s_add_u32 m0, s11, {ii*1024}")
    a(f"""
s_lshl_b32 s10, s9, 13
s_lshl_b32 s11, s9, 11
s_add_u32 s11, s11, {W3+16384}
""")
    for ii in range(2):
        w3step("s[56:59]", 8+(ii&1), f"s_add_u32 s12, s10, {ii*4096}\ns_min_u32 s12, s12, {6*4096}", f"s_add_u32 m0, s11, {ii*1024}")
    if not done["VA"]:
        a("s_waitcnt vmcnt(14)"); signal(C_VA, wait_lds=False)
    if not done["VB"]:
        a("s_waitcnt vmcnt(6)"); signal(C_VB, wait_lds=False)
    stamp_at(4)
    a("s_waitcnt vmcnt(0)")
    stamp_at(10)
    a.label("L_FIN")
    if stamps:
        a("s_mov_b64 exec, -1")
        stamp_at(13)
        a(f"""
s_waitcnt lgkmcnt(0) vmcnt(0)
s_mov_b32 s44, s40
s_mov_b32 s45, s41
s_mov_b32 s46, {WS_STAMP+256*8*64}
s_mov_b32 s47, 0x00020000
s_lshl_b32 s10, s2, 3
s_add_u32 s10, s10, s3
s_lshl_b32 s10, s10, 6
s_add_u32 s10, s10, {WS_STAMP}
v_mov_b32 v4, 0
s_mov_b64 exec, 1
""")
        for i in range(14):
            a(f"v_mov_b32 v6, s{64+2*i}")
            a(f"buffer_store_dword v6, v4, s[44:47], s10 offen offset:{4*i} sc1")
    a("L_end:")
    a("s_endpgm")
    return a.text()

HEADER = open("gated_mix__sliding_block_cached__glu_gated_swiglu__decode.s.ref").read().split("; Override launch geometry")[0]

def full(**kw):
    return wrap(gen(**kw), 256, 512, 163840, vgpr=176, sgpr=102, header=HEADER)

if __name__ == "__main__":
    open("k11.s", "w").write(full())
    open("k11_diag.s", "w").write(full(stamps=True))
    V = {"old": dict(p3full=False), "full": {}, "full16": dict(ysleep=16), "full20": dict(ysleep=20), "old2": dict(p3full=False), "full2": {}}
    for nm, kw in V.items():
        open(f"k11_diag_{nm}.s", "w").write(full(stamps=True, **kw))
```

```python
import sys
from gen_common import *

WS_P1  = 0x1000
WS_P2  = 0x90000
WS_P3  = 0x110000
WS_P2L = 0x210000
WS_END = 0x220000
WS_STAMP = 0x300000
AOFF = 0x400000
LK, LV, LVB, LC = 0, 65536, 98304, 131072
W3 = LC
S0 = LC + 24576
C_P1, C_QK, C_VA, C_VB, C_P, C_S = [S0 + 4*i for i in range(6)]
GG, ML, QQ, XO, XH, PP = S0+32, S0+128, S0+512, S0+6656, S0+7168, S0+2560
PART = S0 + 1536
HASH = 0x9E3779B1
SCALE_LOG2E = 0.08838834764831845 * 1.4426950408889634
LOG2E = 1.4426950408889634

def f32hex(x):
    import struct
    return "0x%08x" % struct.unpack("<I", struct.pack("<f", x))[0]

def gen(stamps=False, dK=5, dV=7, rot=5, poll_limit=20000, pre=1, spin_sleep=1,
        qsleep=2, qslp=1, osleep=3, oslp=1, ysleep=24, yslp=1, hslp=4, bper=16, dW=None, dVB=None, w3late=0, jrot=0, preS=4, vbslp=1, p3full=False):
    a = Asm()
    NT = " nt"
    if p3full:
        P3ADDR = f"""v_lshlrev_b32 v14, 18, v2
v_lshl_add_u32 v14, v1, 3, v14
s_and_b32 s9, s5, 3
s_lshl_b32 s10, s9, 3
s_lshl_b32 s9, s3, 1
s_add_u32 s10, s10, s9
s_lshl_b32 s10, s10, 13
s_lshl_b32 s9, s14, 7
s_add_u32 s10, s10, s9
s_add_u32 s92, s10, {WS_P3}
s_add_u32 s93, s92, 8192"""
    else:
        P3ADDR = f"""v_lshlrev_b32 v14, 18, v2
v_lshrrev_b32 v15, 3, v1
v_lshl_add_u32 v14, v15, 12, v14
v_and_b32 v15, 7, v1
v_lshl_add_u32 v14, v15, 3, v14
s_and_b32 s9, s5, 3
s_lshl_b32 s10, s9, 4
s_lshl_b32 s9, s3, 2
s_add_u32 s10, s10, s9
s_lshl_b32 s10, s10, 12
s_lshl_b32 s9, s14, 6
s_add_u32 s10, s10, s9
s_add_u32 s92, s10, {WS_P3}
s_add_u32 s93, s92, 8192"""
    def stamp_at(i):
        if stamps:
            a(f"s_memrealtime s[{64+2*i}:{65+2*i}]")
    def exec_n4():
        a("s_mov_b32 exec_lo, 0x000F000F\ns_mov_b32 exec_hi, 0x000F000F")
    def exec_all():
        a("s_mov_b64 exec, -1")
    def poll(loads, tags, name, first_sleep=0, mask=None, preissued=False, slp=1, dual=False, lateB=None, R=8, cond=None, after_issue=None):
        L = a.newlabel("Lpoll_"+name); D = a.newlabel("Ldone_"+name); C2 = a.newlabel("Lchk_"+name)
        N1 = a.newlabel("Lnb_"+name); N2 = a.newlabel("Lnb_"+name)
        lim = poll_limit - (poll_limit % bper) + bper - 1
        a(f"s_mov_b32 s62, {lim}")
        if first_sleep: a(f"s_sleep {first_sleep}")
        if mask: a(mask)
        if preissued:
            a(f"s_branch {C2}")
        if after_issue:
            if dual:
                a("s_mov_b32 s56, s98")
                a("s_mov_b32 s57, s99")
            for ln in loads: a(ln)
            after_issue()
            a(f"s_branch {C2}")
        a.label(L)
        if lateB:
            a(f"s_cmp_lg_u32 s62, {lim-R}")
            a(f"s_cbranch_scc1 {N1}")
            if cond:
                a(f"s_cmp_eq_u32 {cond}, 0")
                a(f"s_cbranch_scc1 {N1}")
            a("s_mov_b64 s[60:61], exec")
            a("s_mov_b64 exec, -1")
            a(lateB)
            a("s_mov_b64 exec, s[60:61]")
            a.label(N1)
        if dual:
            a(f"s_and_b32 s63, s62, {bper-1}")
            a("s_cselect_b32 s56, s98, s40")
            a("s_cselect_b32 s57, s99, s41")
        for ln in loads: a(ln)
        a.label(C2)
        a("s_waitcnt vmcnt(0)")
        for i, t in enumerate(tags):
            if i == 0: a(f"v_cmp_ne_u32 vcc, s8, v{t}")
            else:
                a(f"v_cmp_ne_u32 s[60:61], s8, v{t}")
                a("s_or_b64 vcc, vcc, s[60:61]")
        a("s_mov_b64 exec, vcc")
        a(f"s_cbranch_execz {D}")
        a("s_sub_u32 s62, s62, 1")
        a(f"s_cbranch_scc1 {D}")
        if slp: a(f"s_sleep {slp}")
        a(f"s_branch {L}")
        a.label(D)
        a("s_mov_b64 exec, -1")
        if lateB:
            a(f"s_cmp_le_u32 s62, {lim-R}")
            a(f"s_cbranch_scc1 {N2}")
            if cond:
                a(f"s_cmp_eq_u32 {cond}, 0")
                a(f"s_cbranch_scc1 {N2}")
            a(lateB)
            a("s_mov_b64 exec, -1")
            a.label(N2)
    def signal(cnt, wait_lds=True):
        if wait_lds: a("s_waitcnt lgkmcnt(0)")
        a("s_mov_b64 exec, 1")
        a(f"ds_add_u32 v62, v63 offset:{cnt-S0}")
        a("s_mov_b64 exec, -1")
    def spin(cnt, target, name, slp=None):
        L = a.newlabel("Lspin_"+name); D = a.newlabel("Lsd_"+name)
        a(f"s_mov_b32 s62, {poll_limit*8}")
        a.label(L)
        a(f"ds_read_b32 v61, v62 offset:{cnt-S0}")
        a("s_waitcnt lgkmcnt(0)")
        a("v_readfirstlane_b32 s63, v61")
        a(f"s_cmp_ge_u32 s63, {target}")
        a(f"s_cbranch_scc1 {D}")
        a("s_sub_u32 s62, s62, 1")
        a(f"s_cbranch_scc1 {D}")
        sl = spin_sleep if slp is None else slp
        if sl: a(f"s_sleep {sl}")
        a(f"s_branch {L}")
        a.label(D)

    a(f"""
s_cmp_ge_u32 s2, 256
s_cbranch_scc1 L_end
""")
    stamp_at(0)
    a(f"""
s_load_dwordx16 s[16:31], s[0:1], 0
s_load_dwordx8 s[32:39], s[0:1], 64
s_load_dwordx2 s[40:41], s[0:1], 96
v_lshrrev_b32 v1, 6, v0
v_and_b32 v0, 63, v0
v_readfirstlane_b32 s3, v1
v_and_b32 v1, 15, v0
v_lshrrev_b32 v2, 4, v0
v_and_b32 v3, 3, v0
v_lshrrev_b32 v58, 2, v1
s_and_b32 s4, s2, 7
s_lshr_b32 s5, s2, 3
s_lshr_b32 s6, s5, 3
s_and_b32 s7, s5, 7
v_mov_b32 v62, {S0}
v_mov_b32 v63, 1
s_mov_b32 s51, 0x00020000
s_mov_b32 s55, 0x00020000
s_cmp_ge_u32 s3, 4
s_cbranch_scc1 L_GB
; ================= group A =================
s_add_u32 s10, s5, {jrot}
s_and_b32 s10, s10, 15
s_lshl_b32 s9, s4, 4
s_add_u32 s9, s9, s10
s_mul_i32 s10, s4, 14
s_add_u32 s10, s10, s5
s_add_u32 s10, s10, 112
s_cmp_ge_u32 s5, 16
s_cselect_b32 s9, s10, s9
s_movk_i32 s12, 8192
s_movk_i32 s13, 3584
s_mov_b32 s14, 4194304
s_mov_b32 s15, 1835008
s_cselect_b32 s12, s13, s12
s_cselect_b32 s14, s15, s14
s_cselect_b32 s10, 128, 0
s_cmp_ge_u32 s9, 184
s_cselect_b32 s10, 184, s10
s_sub_u32 s10, s9, s10
s_and_b32 s11, s10, 1
s_lshr_b32 s10, s10, 1
s_lshl_b32 s10, s10, 7
s_lshl_b32 s13, s12, 8
s_mul_i32 s13, s13, s11
s_add_u32 s10, s10, s13
s_sub_u32 s50, s14, s10
s_cmp_ge_u32 s5, 30
s_cselect_b32 s50, 0, s50
s_cselect_b32 s9, 255, s9
v_lshrrev_b32 v6, 3, v0
v_mul_lo_u32 v6, v6, s12
v_and_b32 v8, 7, v0
v_bfe_u32 v9, v0, 4, 1
v_lshlrev_b32 v9, 1, v9
v_xor_b32 v8, v8, v9
v_lshl_add_u32 v6, v8, 4, v6
v_xor_b32 v7, 64, v6
s_lshl_b32 s15, s12, 6
s_mul_i32 s15, s15, s3
s_lshl_b32 s13, s12, 3
s_lshl_b32 s14, s3, 13
s_add_u32 s14, s14, {LVB}
s_mov_b32 m0, s14
s_add_u32 s14, s14, 8192
v_lshlrev_b32 v8, 10, v3
v_lshl_add_u32 v8, v2, 4, v8
v_lshlrev_b32 v9, 4, v2
v_mov_b32 v4, 0
v_lshlrev_b32 v172, 4, v0
s_lshl_b32 s60, s11, 9
s_lshl_b32 s61, s3, 7
s_add_u32 s60, s60, s61
s_lshl_b32 s61, s3, 8
s_mov_b32 s46, {WS_END}
s_mov_b32 s47, 0x00020000
s_mov_b32 s54, 4096
s_mov_b32 s58, 1024
s_mov_b32 s59, 0x00020000
s_waitcnt lgkmcnt(0)
""")
    stamp_at(14)
    a(f"""
s_mov_b32 s44, s40
s_mov_b32 s45, s41
s_mov_b32 s52, s16
s_mov_b32 s53, s17
s_mov_b32 s56, s34
s_mov_b32 s57, s35
buffer_load_dword v5, v4, s[44:47], 0 offen sc1
""")
    exec_n4()
    for s in range(2):
        a(f"buffer_load_dwordx4 v[{64+4*s}:{67+4*s}], v8, s[52:55], s60 offen offset:{64*s}")
    for s in range(4):
        a(f"buffer_load_dwordx4 v[{72+4*s}:{75+4*s}], v8, s[52:55], s61 offen offset:{64*s}")
    a("s_mov_b32 exec_lo, 0x00010001\ns_mov_b32 exec_hi, 0x00010001")
    for s in range(4):
        a(f"buffer_load_dwordx4 v[{88+4*s}:{91+4*s}], v9, s[56:59], s61 offen offset:{64*s}")
    exec_all()
    a(f"""
s_cmp_ge_u32 s9, 128
s_cselect_b32 s48, s28, s22
s_cselect_b32 s49, s29, s23
s_cmp_ge_u32 s9, 184
s_cselect_b32 s48, s30, s48
s_cselect_b32 s49, s31, s49
s_add_u32 s48, s48, s10
s_addc_u32 s49, s49, 0
L_W1:
buffer_load_dwordx4 v6, s[48:51], s15 offen{NT} lds
s_add_u32 s15, s15, s13
s_add_u32 m0, m0, 1024
s_nop 0
buffer_load_dwordx4 v7, s[48:51], s15 offen{NT} lds
s_add_u32 s15, s15, s13
s_add_u32 m0, m0, 1024
s_cmp_lt_u32 m0, s14
s_cbranch_scc1 L_W1
s_barrier
""")
    stamp_at(1)
    a(f"""
v_lshl_add_u32 v9, v2, 3, v58
v_lshlrev_b32 v9, 7, v9
v_bfe_u32 v10, v1, 3, 1
v_and_b32 v11, 1, v2
v_lshl_add_u32 v10, v11, 1, v10
v_lshl_add_u32 v9, v10, 5, v9
v_lshl_add_u32 v9, v3, 3, v9
s_lshl_b32 s14, s3, 13
s_add_u32 s14, s14, {LVB}
v_add_u32 v10, s14, v9
v_xor_b32 v11, 32, v10
v_xor_b32 v12, 64, v10
v_xor_b32 v13, 96, v10
v_lshlrev_b32 v8, 6, v2
v_lshl_add_u32 v8, v1, 4, v8
s_mul_i32 s10, s3, 1280
s_add_u32 s10, s10, {PART}
v_add_u32 v8, s10, v8
s_add_u32 s98, s40, {AOFF}
s_addc_u32 s99, s41, 0
s_mov_b32 s52, s98
s_mov_b32 s53, s99
s_mov_b32 s54, {WS_END}
s_mov_b32 s58, {WS_END}
s_mov_b32 s101, 0
s_lshl_b32 s100, s9, 11
s_add_u32 s100, s100, {WS_P1}
s_waitcnt vmcnt(0)
""")
    stamp_at(2)
    for s in range(2):
        for ct in range(4):
            for hf in range(2):
                r = 104 + (s*4+ct)*4 + 2*hf
                a(f"ds_read_b64_tr_b16 v[{r}:{r+1}], v{10+ct} offset:{s*4096+hf*512}")
    for s in range(4):
        c = "0" if s == 0 else "v[32:35]"
        a(f"v_mfma_f32_16x16x32_bf16 v[32:35], v[{88+4*s}:{91+4*s}], v[{72+4*s}:{75+4*s}], {c}")
    a(f"v_readfirstlane_b32 s8, v5\ns_add_u32 s8, s8, 1\ns_mul_i32 s8, s8, {HASH:#x}")
    for s in range(2):
        for ct in range(4):
            c = "0" if s == 0 else f"v[{16+4*ct}:{19+4*ct}]"
            r = 104 + (s*4+ct)*4
            if ct == 0: a(f"s_waitcnt lgkmcnt({8 if s == 0 else 0})")
            a(f"v_mfma_f32_16x16x32_bf16 v[{16+4*ct}:{19+4*ct}], v[{r}:{r+3}], v[{64+4*s}:{67+4*s}], {c}")
    a("s_nop 5")
    exec_n4()
    for t in range(5):
        a(f"ds_write_b128 v8, v[{16+4*t}:{19+4*t}] offset:{256*t}")
    a(f"""
s_mov_b64 exec, 1
s_waitcnt lgkmcnt(0)
ds_add_rtn_u32 v11, v62, v63
s_mov_b64 exec, -1
v_bfe_u32 v8, v0, 3, 2
v_lshlrev_b32 v8, 8, v8
v_bfe_u32 v10, v0, 1, 2
v_lshl_add_u32 v8, v10, 6, v8
v_lshrrev_b32 v10, 5, v0
v_lshl_add_u32 v8, v10, 4, v8
v_and_b32 v10, 1, v0
v_lshl_add_u32 v8, v10, 3, v8
v_add_u32 v8, {PART}, v8
v_lshlrev_b32 v9, 4, v3
v_add_u32 v9, {PART+1024}, v9
v_mov_b32 v165, s8
v_mov_b32 v167, s8
v_mov_b32 v169, s8
v_mov_b32 v171, s8
s_waitcnt lgkmcnt(0)
v_readfirstlane_b32 s10, v11
s_cmp_lg_u32 s10, 3
s_cbranch_scc1 L_QP
""")
    for k in range(2):
        for w in range(4):
            r = 16 + (k*4+w)*2
            a(f"ds_read_b64 v[{r}:{r+1}], v8 offset:{1280*w+32*k}")
    for w in range(4):
        a(f"ds_read_b32 v{32+w}, v9 offset:{1280*w}")
    a(f"""
s_waitcnt lgkmcnt(4)
v_add_f32 v16, v16, v18
v_add_f32 v17, v17, v19
v_add_f32 v20, v20, v22
v_add_f32 v21, v21, v23
v_add_f32 v24, v24, v26
v_add_f32 v25, v25, v27
v_add_f32 v28, v28, v30
v_add_f32 v29, v29, v31
v_add_f32 v164, v16, v20
v_add_f32 v166, v17, v21
v_add_f32 v168, v24, v28
v_add_f32 v170, v25, v29
s_cmp_ge_u32 s9, 128
s_cbranch_scc1 L_NOA1
s_mov_b32 s101, 1
buffer_store_dwordx4 v[164:167], v172, s[52:55], s100 offen
buffer_store_dwordx4 v[168:171], v172, s[52:55], s100 offen offset:1024
s_branch L_NOA2
L_NOA1:
buffer_store_dwordx4 v[164:167], v172, s[44:47], s100 offen sc1
buffer_store_dwordx4 v[168:171], v172, s[44:47], s100 offen offset:1024 sc1
L_NOA2:
s_waitcnt lgkmcnt(0)
v_add_f32 v32, v32, v33
v_add_f32 v34, v34, v35
v_add_f32 v32, v32, v34
v_mul_f32 v32, {f32hex(-LOG2E)}, v32
v_exp_f32 v32, v32
v_lshlrev_b32 v9, 2, v0
v_add_f32 v32, 1.0, v32
v_rcp_f32 v32, v32
v_add_u32 v9, {GG}, v9
s_mov_b64 exec, 15
ds_write_b32 v9, v32
s_mov_b64 exec, -1
L_QP:
""")
    stamp_at(3)
    a(f"""
v_lshrrev_b32 v9, 5, v0
v_lshlrev_b32 v9, 12, v9
v_and_b32 v10, 31, v0
v_lshl_add_u32 v9, v10, 4, v9
s_lshl_b32 s10, s4, 4
s_lshl_b32 s11, s3, 2
s_add_u32 s10, s10, s11
s_lshl_b32 s10, s10, 11
s_lshl_b32 s11, s6, 9
s_add_u32 s10, s10, s11
s_add_u32 s10, s10, {WS_P1}
""")
    poll(["buffer_load_dwordx4 v[24:27], v9, s[56:59], s10 offen sc1",
          "buffer_load_dwordx4 v[28:31], v9, s[56:59], s10 offen offset:2048 sc1"], [25, 27, 29, 31], "q",
         first_sleep=qsleep, slp=qslp, dual=True, cond="s101", R=3,
         lateB="buffer_store_dwordx4 v[164:167], v172, s[44:47], s100 offen sc1\nbuffer_store_dwordx4 v[168:171], v172, s[44:47], s100 offen offset:1024 sc1")
    a(f"""
s_lshl_b32 s10, s3, 8
s_add_u32 s10, s10, {QQ}
v_add_f32 v24, v24, v28
v_add_f32 v26, v26, v30
v_lshlrev_b32 v9, 2, v0
v_add_u32 v9, s10, v9
v_cvt_pk_bf16_f32 v24, v24, v26
ds_write_b32 v9, v24
""")
    signal(C_QK)
    stamp_at(4)
    a(f"""
v_xor_b32 v8, v2, v1
s_lshl_b32 s10, s3, 14
v_lshl_add_u32 v9, v1, 8, s10
v_lshl_add_u32 v10, v8, 4, v9
v_xor_b32 v11, 64, v10
v_xor_b32 v12, 128, v10
v_xor_b32 v13, 192, v10
v_lshlrev_b32 v14, 8, v58
v_lshl_add_u32 v14, v2, 4, v14
v_add_u32 v14, {QQ}, v14
s_mov_b32 s12, {f32hex(SCALE_LOG2E)}
v_lshlrev_b32 v36, 6, v2
v_lshl_add_u32 v36, v58, 4, v36
s_lshl_b32 s11, s3, 9
s_add_u32 s11, s11, {PP}
v_add_u32 v37, s11, v36
v_lshlrev_b32 v38, 5, v58
s_lshl_b32 s11, s3, 2
s_add_u32 s11, s11, {ML}
v_add_u32 v39, s11, v38
s_lshl_b32 s13, s4, 2
s_add_u32 s13, s13, s6
s_lshl_b32 s14, s13, 1
s_bfe_u32 s15, s5, 0x10002
s_add_u32 s14, s14, s15
v_min_u32 v8, 13, v1
s_mul_i32 s10, s14, 28
v_lshl_add_u32 v9, v8, 1, s10
v_lshrrev_b32 v59, 6, v9
v_lshlrev_b32 v59, 12, v59
v_and_b32 v8, 63, v9
v_lshl_add_u32 v59, v8, 3, v59
s_lshl_b32 s10, s3, 9
s_add_u32 s96, s10, {WS_P1+128*2048}
s_add_u32 s97, s10, {WS_P1+184*2048}
""")
    spin(C_QK, 8, "qk")
    stamp_at(5)
    for j in range(4):
        a(f"ds_read_b128 v[{64+4*j}:{67+4*j}], v14 offset:{64*j}")
    for tt in range(4):
        for j in range(4):
            r = 80+(tt*4+j)*4
            a(f"ds_read_b128 v[{r}:{r+3}], v{10+j} offset:{tt*4096}")
    for tt in range(4):
        a(f"s_waitcnt lgkmcnt({12-4*tt})")
        for j in range(4):
            r = 80+(tt*4+j)*4
            c = "0" if j == 0 else f"v[{16+4*tt}:{19+4*tt}]"
            a(f"v_mfma_f32_16x16x32_bf16 v[{16+4*tt}:{19+4*tt}], v[{r}:{r+3}], v[{64+4*j}:{67+4*j}], {c}")
    HL = ["buffer_load_dwordx4 v[144:147], v59, s[44:47], s96 offen sc1",
          "buffer_load_dwordx4 v[148:151], v59, s[44:47], s96 offen offset:2048 sc1",
          "buffer_load_dwordx4 v[152:155], v59, s[44:47], s97 offen sc1",
          "buffer_load_dwordx4 v[156:159], v59, s[44:47], s97 offen offset:2048 sc1"]
    a("s_mov_b64 exec, 0xffff")
    for ln in HL: a(ln)
    exec_all()
    a(f"""
v_max3_f32 v32, v16, v17, v18
v_max3_f32 v33, v19, v20, v21
v_max3_f32 v32, v32, v22, v23
v_max3_f32 v33, v33, v24, v25
v_max3_f32 v32, v32, v26, v27
v_max3_f32 v33, v33, v28, v29
v_max3_f32 v32, v32, v30, v31
v_max_f32 v32, v32, v33
v_mov_b32 v33, v32
s_nop 1
v_permlane32_swap_b32 v32, v33
v_max_f32 v32, v32, v33
v_mov_b32 v33, v32
s_nop 1
v_permlane16_swap_b32 v32, v33
v_max_f32 v32, v32, v33
v_mul_f32 v32, s12, v32
""")
    for i in range(16):
        a(f"v_fma_f32 v{16+i}, v{16+i}, s12, -v32")
    for i in range(16):
        a(f"v_exp_f32 v{16+i}, v{16+i}")
    for i in range(8):
        a(f"v_cvt_pk_bf16_f32 v{40+i}, v{16+2*i}, v{17+2*i}")
    for i in range(8):
        a(f"v_add_f32 v{16+2*i}, v{16+2*i}, v{17+2*i}")
    a(f"""
v_add_f32 v16, v16, v18
v_add_f32 v20, v20, v22
v_add_f32 v24, v24, v26
v_add_f32 v28, v28, v30
v_add_f32 v16, v16, v20
v_add_f32 v24, v24, v28
v_add_f32 v33, v16, v24
v_mov_b32 v34, v33
s_mov_b32 exec_lo, 0x11111111
s_mov_b32 exec_hi, 0x11111111
ds_write_b128 v37, v[40:43]
ds_write_b128 v37, v[44:47] offset:256
s_mov_b64 exec, -1
v_permlane32_swap_b32 v33, v34
v_add_f32 v33, v33, v34
v_mov_b32 v34, v33
s_nop 1
v_permlane16_swap_b32 v33, v34
v_add_f32 v33, v33, v34
s_mov_b64 exec, 0x1111
ds_write_b32 v39, v32
ds_write_b32 v39, v33 offset:16
s_mov_b64 exec, -1
""")
    signal(C_P)
    stamp_at(6)
    a(f"""
v_add_u32 v36, {PP}, v36
v_lshlrev_b32 v38, 5, v2
v_add_u32 v38, {ML}, v38
v_lshl_add_u32 v9, v2, 2, v58
v_and_b32 v10, 7, v9
v_lshlrev_b32 v10, 1, v10
v_lshrrev_b32 v11, 1, v3
s_lshl_b32 s10, s3, 2
v_add_u32 v11, s10, v11
v_xor_b32 v10, v10, v11
v_lshlrev_b32 v10, 4, v10
v_lshl_add_u32 v10, v9, 8, v10
v_and_b32 v11, 1, v3
v_lshl_add_u32 v10, v11, 3, v10
v_add_u32 v12, {LV}, v10
v_xor_b32 v13, 32, v12
v_add_u32 v6, {W3}, v10
v_xor_b32 v7, 32, v6
s_lshl_b32 s10, s4, 4
s_add_u32 s10, s10, s6
s_lshl_b32 s10, s10, 3
s_add_u32 s10, s10, s7
v_lshlrev_b32 v160, 14, v2
v_and_b32 v15, 1, v1
v_lshl_add_u32 v160, v15, 6, v160
v_lshrrev_b32 v15, 1, v1
v_lshl_add_u32 v160, v15, 3, v160
s_lshl_b32 s94, s10, 9
s_lshl_b32 s12, s3, 7
s_add_u32 s94, s94, s12
s_add_u32 s94, s94, {WS_P2}
v_lshlrev_b32 v161, 11, v2
v_lshl_add_u32 v161, v1, 3, v161
s_lshl_b32 s95, s10, 6
s_add_u32 s95, s95, {WS_P2L}
s_lshl_b32 s12, s3, 4
s_mov_b64 s[86:87], 0xff
s_lshl_b64 s[86:87], s[86:87], s12
s_mov_b32 s42, 0xAAAAAAAA
s_mov_b32 s43, 0xAAAAAAAA
s_lshl_b32 s10, s13, 2
s_add_u32 s10, s10, s3
s_lshl_b32 s11, s10, 12
s_lshl_b32 s12, s15, 8
s_add_u32 s11, s11, s12
s_add_u32 s11, s11, {WS_P2}
s_lshl_b32 s12, s10, 9
s_add_u32 s12, s12, {WS_P2L+56}
v_lshlrev_b32 v173, 4, v1
v_lshl_add_u32 v173, v2, 10, v173
v_lshlrev_b32 v174, 7, v2
v_lshrrev_b32 v175, 3, v1
v_lshlrev_b32 v175, 8, v175
v_lshl_add_u32 v175, v3, 4, v175
v_bfe_u32 v15, v1, 2, 1
v_lshl_add_u32 v175, v15, 3, v175
s_lshl_b32 s10, s3, 6
s_add_u32 s10, s10, {XO}
v_add_u32 v175, s10, v175
""")
    spin(C_P, 4, "p")
    for s in range(8):
        a(f"ds_read_b128 v[{64+4*s}:{67+4*s}], v36 offset:{256*s}")
    a(f"""
ds_read_b128 v[48:51], v38
ds_read_b128 v[52:55], v38 offset:16
s_waitcnt lgkmcnt(0)
v_max3_f32 v56, v48, v49, v50
v_max_f32 v56, v56, v51
v_sub_f32 v48, v48, v56
v_sub_f32 v49, v49, v56
v_sub_f32 v50, v50, v56
v_sub_f32 v51, v51, v56
v_exp_f32 v48, v48
v_exp_f32 v49, v49
v_exp_f32 v50, v50
v_exp_f32 v51, v51
s_nop 0
v_mul_f32 v57, v48, v52
v_fmac_f32 v57, v49, v53
v_fmac_f32 v57, v50, v54
v_fmac_f32 v57, v51, v55
v_rcp_f32 v55, v57
v_log_f32 v162, v57
v_mov_b32 v163, s8
v_mov_b32 v133, s8
v_mul_f32 v48, v48, v55
v_mul_f32 v49, v49, v55
v_mul_f32 v50, v50, v55
v_mul_f32 v51, v51, v55
v_add_f32 v162, v162, v56
""")
    def pv_stage(st):
        for u in range(2):
            for sl in range(4):
                s = st*4 + sl
                for hf in range(2):
                    r = 96 + (u*4+sl)*4 + 2*hf
                    a(f"ds_read_b64_tr_b16 v[{r}:{r+1}], v{12+u} offset:{s*8192+hf*4096}")
        n = 16
        for u in range(2):
            for sl in range(4):
                s = st*4 + sl
                tq = s >> 1
                r = 96 + (u*4+sl)*4
                acc = 16 + (u*4+tq)*4
                n -= 2
                a(f"s_waitcnt lgkmcnt({n})")
                c = "0" if (s & 1) == 0 else f"v[{acc}:{acc+3}]"
                a(f"v_mfma_f32_16x16x32_bf16 v[{acc}:{acc+3}], v[{64+4*s}:{67+4*s}], v[{r}:{r+3}], {c}")
    spin(C_VA, 4, "va")
    pv_stage(0)
    a("s_nop 7")
    for u in range(2):
        a(f"v_mul_f32 v{128+u}, v48, v{16+(u*4+0)*4}")
    for u in range(2):
        a(f"v_fmac_f32 v{128+u}, v49, v{16+(u*4+1)*4}")
    poll(HL, [145+2*i for i in range(8)], "h", mask="s_mov_b64 exec, 0xffff", preissued=True, slp=hslp)
    a(f"""
v_add_f32 v16, v144, v148
v_add_f32 v17, v146, v150
v_add_f32 v18, v152, v156
v_add_f32 v19, v154, v158
v_mul_f32 v20, {f32hex(-LOG2E)}, v16
v_mul_f32 v21, {f32hex(-LOG2E)}, v17
v_exp_f32 v20, v20
v_exp_f32 v21, v21
v_mul_f32 v16, v16, v18
v_add_f32 v20, 1.0, v20
v_add_f32 v21, 1.0, v21
v_rcp_f32 v20, v20
v_rcp_f32 v21, v21
v_mul_f32 v17, v17, v19
v_mul_f32 v16, v16, v20
v_mul_f32 v17, v17, v21
v_cvt_pk_bf16_f32 v16, v16, v17
v_cmp_gt_u32 vcc, 14, v1
v_bfe_u32 v23, v1, 1, 2
v_lshlrev_b32 v22, 4, v23
v_lshrrev_b32 v23, 3, v1
v_lshl_add_u32 v22, v23, 3, v22
v_and_b32 v23, 1, v1
v_lshl_add_u32 v22, v23, 2, v22
s_lshl_b32 s10, s3, 6
s_add_u32 s10, s10, {XH}
v_add_u32 v22, s10, v22
v_cndmask_b32 v16, 0, v16, vcc
s_mov_b64 exec, 0xffff
ds_write_b32 v22, v16
s_mov_b64 exec, -1
v_lshlrev_b32 v8, 6, v58
v_lshl_add_u32 v8, v2, 4, v8
v_add_u32 v9, {XO}, v8
v_lshlrev_b32 v10, 2, v2
v_add_u32 v10, {GG}, v10
{P3ADDR}
""")
    spin(C_VB, 4, "vb", slp=vbslp)
    stamp_at(7)
    pv_stage(1)
    a(f"""
s_nop 6
v_fmac_f32 v128, v50, v24
v_fmac_f32 v129, v50, v40
v_fmac_f32 v128, v51, v28
v_fmac_f32 v129, v51, v44
s_nop 0
v_mov_b32_dpp v130, v128 quad_perm:[1,0,3,2] row_mask:0xf bank_mask:0xf
v_mov_b32_dpp v131, v129 quad_perm:[1,0,3,2] row_mask:0xf bank_mask:0xf
v_cvt_pk_bf16_f32 v130, v128, v130
v_cvt_pk_bf16_f32 v131, v131, v129
v_cndmask_b32 v132, v130, v131, s[42:43]
buffer_store_dwordx2 v[132:133], v160, s[52:55], s94 offen
s_mov_b64 exec, s[86:87]
buffer_store_dwordx2 v[162:163], v161, s[52:55], s95 offen
s_mov_b64 exec, -1
""")
    if w3late == 1: signal(C_S, wait_lds=False)
    stamp_at(8)
    loads = [f"buffer_load_dwordx4 v[{64+4*i}:{67+4*i}], v173, s[56:59], s11 offen offset:{512*i} sc1" for i in range(2)]
    loads += ["buffer_load_dwordx4 v[72:75], v174, s[56:59], s12 offen sc1"]
    poll(loads, [65+2*i for i in range(6)], "o", first_sleep=osleep, slp=oslp, dual=True, R=10, after_issue=((lambda: signal(C_S, wait_lds=False)) if w3late == 2 else None),
         lateB="buffer_store_dwordx2 v[132:133], v160, s[44:47], s94 offen sc1\ns_mov_b64 exec, s[86:87]\nbuffer_store_dwordx2 v[162:163], v161, s[44:47], s95 offen sc1")
    stamp_at(9)
    a(f"""
v_max_f32 v16, v72, v74
v_lshlrev_b32 v40, 16, v64
v_mov_b32 v17, v16
v_and_b32 v41, 0xffff0000, v64
v_lshlrev_b32 v42, 16, v66
v_permlane32_swap_b32 v16, v17
v_and_b32 v43, 0xffff0000, v66
v_max_f32 v16, v16, v17
v_lshlrev_b32 v44, 16, v68
v_mov_b32 v17, v16
v_and_b32 v45, 0xffff0000, v68
v_lshlrev_b32 v46, 16, v70
v_permlane16_swap_b32 v16, v17
v_and_b32 v47, 0xffff0000, v70
v_max_f32 v16, v16, v17
v_sub_f32 v72, v72, v16
v_sub_f32 v74, v74, v16
v_exp_f32 v72, v72
v_exp_f32 v74, v74
v_mov_b32 v29, s8
v_mul_f32 v18, v72, v40
v_mul_f32 v19, v72, v41
v_mul_f32 v20, v72, v42
v_mul_f32 v21, v72, v43
v_add_f32 v16, v72, v74
v_fmac_f32 v18, v74, v44
v_fmac_f32 v19, v74, v45
v_fmac_f32 v20, v74, v46
v_fmac_f32 v21, v74, v47
v_mov_b32 v17, v16
v_mov_b32 v24, v18
v_mov_b32 v25, v19
v_mov_b32 v26, v20
v_mov_b32 v27, v21
v_permlane32_swap_b32 v16, v17
v_permlane32_swap_b32 v18, v24
v_permlane32_swap_b32 v19, v25
v_permlane32_swap_b32 v20, v26
v_permlane32_swap_b32 v21, v27
v_add_f32 v16, v16, v17
v_add_f32 v18, v18, v24
v_add_f32 v19, v19, v25
v_add_f32 v20, v20, v26
v_add_f32 v21, v21, v27
v_mov_b32 v17, v16
v_mov_b32 v24, v18
v_mov_b32 v25, v19
v_mov_b32 v26, v20
v_mov_b32 v27, v21
v_permlane16_swap_b32 v16, v17
v_permlane16_swap_b32 v18, v24
v_permlane16_swap_b32 v19, v25
v_permlane16_swap_b32 v20, v26
v_permlane16_swap_b32 v21, v27
v_add_f32 v16, v16, v17
v_add_f32 v18, v18, v24
v_rcp_f32 v16, v16
v_add_f32 v19, v19, v25
v_add_f32 v20, v20, v26
v_add_f32 v21, v21, v27
v_mul_f32 v18, v18, v16
v_mul_f32 v19, v19, v16
v_mul_f32 v20, v20, v16
v_mul_f32 v21, v21, v16
v_cvt_pk_bf16_f32 v18, v18, v19
v_cvt_pk_bf16_f32 v19, v20, v21
ds_write_b64 v175, v[18:19]
v_mov_b32 v31, s8
s_waitcnt lgkmcnt(0)
s_barrier
""")
    stamp_at(10)
    a(f"""
ds_read_b128 v[64:67], v9
ds_read_b128 v[68:71], v9 offset:256
ds_read_b128 v[72:75], v9 offset:{XH-XO}
ds_read_b32 v11, v10
""")
    for u in range(2):
        for s in range(3):
            for hf in range(2):
                r = 96 + (u*3+s)*4 + 2*hf
                a(f"ds_read_b64_tr_b16 v[{r}:{r+1}], v{6+u} offset:{s*8192+hf*4096}")
    a("s_waitcnt lgkmcnt(6)")
    for u in range(2):
        b0 = 16 + 24*u
        r = 96 + u*12
        if u == 1: a("s_waitcnt lgkmcnt(0)")
        a(f"v_mfma_f32_16x16x32_bf16 v[{b0+4}:{b0+7}], v[72:75], v[{r+8}:{r+11}], 0")
        a(f"v_mfma_f32_16x16x32_bf16 v[{b0}:{b0+3}], v[64:67], v[{r}:{r+3}], 0")
        a(f"v_mfma_f32_16x16x32_bf16 v[{b0}:{b0+3}], v[68:71], v[{r+4}:{r+7}], v[{b0}:{b0+3}]")
    a(f"""
v_sub_f32 v12, 1.0, v11
s_nop 3
v_mul_f32 v20, v20, v12
v_fma_f32 v28, v16, v11, v20
buffer_store_dwordx2 v[28:29], v14, s[44:47], s92 offen sc1
v_mul_f32 v44, v44, v12
s_nop 0
v_fma_f32 v30, v40, v11, v44
buffer_store_dwordx2 v[30:31], v14, s[44:47], s93 offen sc1
""")
    stamp_at(11)
    if p3full:
        YADDR = f"""s_lshr_b32 s10, s2, 1
s_lshl_b32 s10, s10, 13
s_and_b32 s11, s2, 1
s_lshl_b32 s11, s11, 6
s_add_u32 s10, s10, s11
s_add_u32 s10, s10, {WS_P3}
v_lshrrev_b32 v8, 2, v0
v_lshlrev_b32 v8, 7, v8
v_lshl_add_u32 v8, v3, 4, v8"""
        ystep = 2048
    else:
        YADDR = f"""s_lshl_b32 s10, s2, 12
s_add_u32 s10, s10, {WS_P3}
v_lshlrev_b32 v8, 4, v0"""
        ystep = 1024
    a(f"""
s_cmp_lg_u32 s3, 0
s_cbranch_scc1 L_FIN
{YADDR}
s_mov_b32 s48, s36
s_mov_b32 s49, s37
s_mov_b32 s50, 4096
""")
    if p3full:
        a("s_add_u32 s11, s10, 4096")
        loads = [f"buffer_load_dwordx4 v[{64+4*i}:{67+4*i}], v8, s[44:47], {'s10' if i < 2 else 's11'} offen offset:{2048*(i&1)} sc1" for i in range(4)]
    else:
        loads = [f"buffer_load_dwordx4 v[{64+4*i}:{67+4*i}], v8, s[44:47], s10 offen offset:{1024*i} sc1" for i in range(4)]
    poll(loads, [65+2*i for i in range(8)], "y", slp=yslp, first_sleep=ysleep)
    stamp_at(12)
    a(f"""
v_add_f32 v16, v64, v68
v_add_f32 v17, v66, v70
v_add_f32 v18, v72, v76
v_add_f32 v19, v74, v78
v_add_f32 v16, v16, v18
v_add_f32 v17, v17, v19
v_lshlrev_b32 v8, 2, v0
s_lshl_b32 s10, s2, 4
v_add_f32_dpp v16, v16, v16 row_ror:4 row_mask:0xf bank_mask:0xf
v_add_f32_dpp v17, v17, v17 row_ror:4 row_mask:0xf bank_mask:0xf
s_nop 1
v_add_f32_dpp v16, v16, v16 row_ror:8 row_mask:0xf bank_mask:0xf
v_add_f32_dpp v17, v17, v17 row_ror:8 row_mask:0xf bank_mask:0xf
v_mov_b32 v18, v16
v_mov_b32 v19, v17
s_nop 1
v_permlane16_swap_b32 v16, v18
v_permlane16_swap_b32 v17, v19
v_add_f32 v16, v16, v18
v_add_f32 v17, v17, v19
v_mov_b32 v18, v16
v_mov_b32 v19, v17
s_nop 1
v_permlane32_swap_b32 v16, v18
v_permlane32_swap_b32 v17, v19
v_add_f32 v16, v16, v18
v_add_f32 v17, v17, v19
v_cvt_pk_bf16_f32 v16, v16, v17
s_mov_b64 exec, 15
buffer_store_dword v16, v8, s[48:51], s10 offen sc1
s_cmp_lg_u32 s2, 0
s_cbranch_scc1 L_FIN
s_mov_b64 exec, 1
v_add_u32 v5, 1, v5
buffer_store_dword v5, v4, s[44:47], 0 offen sc1
s_branch L_FIN
""")
    a.label("L_GB")
    a(f"""
s_sub_u32 s9, s3, 4
s_lshl_b32 s10, s6, 3
s_add_u32 s10, s10, s4
s_lshl_b32 s10, s10, 21
s_lshl_b32 s11, s7, 16
s_add_u32 s13, s10, s11
s_add_u32 s13, s13, {6144*256}
s_mov_b32 s50, 65536
s_mov_b32 s54, 65536
s_mul_i32 s10, s2, {rot}
s_add_u32 s10, s10, s9
s_and_b32 s10, s10, 63
s_and_b32 s11, s10, 3
s_lshl_b32 s11, s11, 2
v_add_u32 v6, s11, v2
v_xor_b32 v6, v6, v1
v_lshlrev_b32 v6, 4, v6
v_lshl_add_u32 v6, v2, 8, v6
s_and_b32 s11, s10, 1
s_lshl_b32 s11, s11, 2
v_add_u32 v7, s11, v2
v_lshlrev_b32 v7, 1, v7
v_xor_b32 v7, v7, v1
v_lshlrev_b32 v7, 4, v7
v_lshl_add_u32 v7, v2, 8, v7
v_mov_b32 v8, 0
v_mov_b32 v9, 0
v_mov_b32 v10, 0
v_mov_b32 v11, 0
ds_write_b128 v62, v[8:11]
ds_write_b128 v62, v[8:11] offset:16
v_mov_b32 v60, {C_QK}
s_mov_b32 s12, 16
s_and_b32 s42, s5, 30
s_cmp_eq_u32 s42, 6
s_cselect_b32 s42, {16-(preS if preS is not None else pre)}, {16-pre}
s_waitcnt lgkmcnt(0)
""")
    stamp_at(14)
    a(f"""
s_add_u32 s48, s18, s13
s_addc_u32 s49, s19, 0
s_add_u32 s52, s20, s13
s_addc_u32 s53, s21, 0
{"s_barrier" if pre == 0 else ""}
L_KL:
s_lshl_b32 s11, s10, 10
s_mov_b32 m0, s11
s_add_u32 s10, s10, 4
s_and_b32 s10, s10, 63
s_waitcnt vmcnt({dK-1})
buffer_load_dwordx4 v6, s[48:51], s11 offen{NT} lds
s_sub_u32 s12, s12, 1
{"" if pre == 0 else f"s_cmp_lg_u32 s12, s42" + chr(10) + "s_cbranch_scc1 L_KL2" + chr(10) + "s_barrier" + chr(10) + "L_KL2:"}
s_cmp_lg_u32 s12, 0
s_cbranch_scc1 L_KL
s_and_b32 s10, s10, 31
s_mov_b32 s13, 0
""")
    stamp_at(2)
    a(f"""
s_mov_b32 s12, 0
s_mov_b32 s15, {dV-1}
s_lshl_b32 s14, s4, 2
s_add_u32 s14, s14, s6
s_lshl_b32 s14, s14, 1
s_bfe_u32 s11, s5, 0x10002
s_add_u32 s14, s14, s11
s_and_b32 s11, s5, 3
s_lshl_b32 s11, s11, 8
s_lshl_b32 s16, s14, 16
s_add_u32 s16, s16, s11
s_add_u32 s48, s24, s16
s_addc_u32 s49, s25, 0
s_sub_u32 s50, 4194304, s16
s_mul_i32 s16, s14, {28*1024}
s_add_u32 s16, s16, s11
s_add_u32 s56, s32, s16
s_addc_u32 s57, s33, 0
s_sub_u32 s58, 1835008, s16
s_mov_b32 s59, 0x00020000
v_lshlrev_b32 v8, 1, v2
v_xor_b32 v8, v8, v1
v_lshlrev_b32 v8, 4, v8
v_lshl_add_u32 v8, v2, 10, v8
v_xor_b32 v9, 0x80, v8
L_VL:
s_cmp_lg_u32 s12, 8
s_cbranch_scc1 L_V1
""")
    spin(C_P1, 4, "p1")
    a(f"""
s_mov_b32 s13, 32768
L_V1:
s_lshl_b32 s11, s10, 10
s_add_u32 s11, s11, s13
s_add_u32 m0, s11, {LV}
s_add_u32 s10, s10, 4
s_and_b32 s10, s10, 31
{f"s_waitcnt vmcnt({dV-1})" if dVB is None else f"s_cmp_lt_u32 s12, 8" + chr(10) + "s_cbranch_scc1 L_Va" + chr(10) + f"s_waitcnt vmcnt({dVB-1})" + chr(10) + "s_branch L_Vb" + chr(10) + "L_Va:" + chr(10) + f"s_waitcnt vmcnt({dV-1})" + chr(10) + "L_Vb:"}
s_cmp_lg_u32 s12, s15
s_cbranch_scc1 L_V2
s_mov_b64 exec, 1
ds_add_u32 v60, v63
s_mov_b64 exec, -1
v_add_u32 v60, 4, v60
s_mov_b32 s15, {(dV if dVB is None else dVB)+7}
s_cmp_eq_u32 s12, {(dV if dVB is None else dVB)+7}
s_cselect_b32 s15, 99, s15
L_V2:
buffer_load_dwordx4 v7, s[52:55], s11 offen{NT} lds
s_add_u32 s12, s12, 1
s_cmp_lt_u32 s12, 16
s_cbranch_scc1 L_VL
""")
    stamp_at(3)
    a(f"""
s_lshl_b32 s10, s9, 14
s_lshl_b32 s11, s9, 12
s_add_u32 s11, s11, {W3}
""")
    k = 0
    dWw = dW if dW is not None else dV
    done = {"VA": (dV if dVB is None else dVB)+7 <= 15, "VB": False}
    if not done["VA"]:
        a("s_waitcnt vmcnt(8)"); signal(C_VA, wait_lds=False); done["VA"] = True
    if w3late:
        a("s_waitcnt vmcnt(0)"); signal(C_VB, wait_lds=False); done["VB"] = True
        spin(C_S, 4, "w3go")
        dWw = 16
    def w3step(srd, vreg, soff_line, m0_line):
        nonlocal k
        a(m0_line); a(soff_line)
        a(f"s_waitcnt vmcnt({dWw-1})")
        if not done["VA"] and dWw-1 <= 8 + k: signal(C_VA, wait_lds=False); done["VA"] = True
        if not done["VB"] and dWw-1 <= k: signal(C_VB, wait_lds=False); done["VB"] = True
        a(f"buffer_load_dwordx4 v{vreg}, {srd}, s12 offen{NT} lds")
        k += 1
    for ii in range(4):
        w3step("s[48:51]", 8+(ii&1), f"s_add_u32 s12, s10, {ii*4096}", f"s_add_u32 m0, s11, {ii*1024}")
    a(f"""
s_lshl_b32 s10, s9, 13
s_lshl_b32 s11, s9, 11
s_add_u32 s11, s11, {W3+16384}
""")
    for ii in range(2):
        w3step("s[56:59]", 8+(ii&1), f"s_add_u32 s12, s10, {ii*4096}\ns_min_u32 s12, s12, {6*4096}", f"s_add_u32 m0, s11, {ii*1024}")
    if not done["VA"]:
        a("s_waitcnt vmcnt(14)"); signal(C_VA, wait_lds=False)
    if not done["VB"]:
        a("s_waitcnt vmcnt(6)"); signal(C_VB, wait_lds=False)
    stamp_at(4)
    a("s_waitcnt vmcnt(0)")
    stamp_at(10)
    a.label("L_FIN")
    if stamps:
        a("s_mov_b64 exec, -1")
        stamp_at(13)
        a(f"""
s_waitcnt lgkmcnt(0) vmcnt(0)
s_mov_b32 s44, s40
s_mov_b32 s45, s41
s_mov_b32 s46, {WS_STAMP+256*8*64}
s_mov_b32 s47, 0x00020000
s_lshl_b32 s10, s2, 3
s_add_u32 s10, s10, s3
s_lshl_b32 s10, s10, 6
s_add_u32 s10, s10, {WS_STAMP}
v_mov_b32 v4, 0
s_mov_b64 exec, 1
""")
        for i in range(14):
            a(f"v_mov_b32 v6, s{64+2*i}")
            a(f"buffer_store_dword v6, v4, s[44:47], s10 offen offset:{4*i} sc1")
    a("L_end:")
    a("s_endpgm")
    return a.text()

HEADER = open("gated_mix__sliding_block_cached__glu_gated_swiglu__decode.s.ref").read().split("; Override launch geometry")[0]

DOC = """; ---------------------------------------------------------------------------------------------
;  waves 0-3 : phase 1  x@{wq|w1|w3} slice (64 cols x 256 rows, MFMA) + gate logit -> published as tagged granules
;  Cross-workgroup hand-offs use 8-byte {data, tag} granules in d_ws; tag = hash(epoch+1), epoch word = d_ws[0]
; ---------------------------------------------------------------------------------------------
"""
def full(**kw):
    return wrap(gen(**kw), 256, 512, 163840, vgpr=176, sgpr=102, header=HEADER + DOC)

if __name__ == "__main__":
    open("k11.s", "w").write(full())
    open("k11_diag.s", "w").write(full(stamps=True))
```

```python
import sys
from gen_common import *

WS_P1  = 0x1000
WS_P2  = 0x90000
WS_P3  = 0x110000
WS_P2L = 0x210000
WS_END = 0x220000
WS_STAMP = 0x300000
AOFF = 0x400000
LK, LV, LVB, LC = 0, 65536, 98304, 131072
W3 = LC
S0 = LC + 24576
C_P1, C_QK, C_VA, C_VB, C_P, C_S, C_RK = [S0 + 4*i for i in range(7)]
GG, ML, QQ, XO, XH, PP = S0+32, S0+128, S0+512, S0+6656, S0+7168, S0+2560
PART = S0 + 1536
HASH = 0x9E3779B1
SCALE_LOG2E = 0.08838834764831845 * 1.4426950408889634
LOG2E = 1.4426950408889634

def f32hex(x):
    import struct
    return "0x%08x" % struct.unpack("<I", struct.pack("<f", x))[0]

def gen(stamps=False, dK=5, dV=7, rot=5, poll_limit=20000, pre=1, spin_sleep=1,
        qsleep=2, qslp=1, osleep=3, oslp=1, ysleep=24, yslp=1, hslp=4, bper=16, dW=None, dVB=None, w3late=0, jrot=0, preS=4, vbslp=1, p3full=False, rank=None):
    a = Asm()
    NT = " nt"
    if p3full:
        P3ADDR = f"""v_lshlrev_b32 v14, 18, v2
v_lshl_add_u32 v14, v1, 3, v14
s_and_b32 s9, s5, 3
s_lshl_b32 s10, s9, 3
s_lshl_b32 s9, s3, 1
s_add_u32 s10, s10, s9
s_lshl_b32 s10, s10, 13
s_lshl_b32 s9, s14, 7
s_add_u32 s10, s10, s9
s_add_u32 s92, s10, {WS_P3}
s_add_u32 s93, s92, 8192"""
    else:
        P3ADDR = f"""v_lshlrev_b32 v14, 18, v2
v_lshrrev_b32 v15, 3, v1
v_lshl_add_u32 v14, v15, 12, v14
v_and_b32 v15, 7, v1
v_lshl_add_u32 v14, v15, 3, v14
s_and_b32 s9, s5, 3
s_lshl_b32 s10, s9, 4
s_lshl_b32 s9, s3, 2
s_add_u32 s10, s10, s9
s_lshl_b32 s10, s10, 12
s_lshl_b32 s9, s14, 6
s_add_u32 s10, s10, s9
s_add_u32 s92, s10, {WS_P3}
s_add_u32 s93, s92, 8192"""
    def stamp_at(i):
        if stamps:
            a(f"s_memrealtime s[{64+2*i}:{65+2*i}]")
    def exec_n4():
        a("s_mov_b32 exec_lo, 0x000F000F\ns_mov_b32 exec_hi, 0x000F000F")
    def exec_all():
        a("s_mov_b64 exec, -1")
    def poll(loads, tags, name, first_sleep=0, mask=None, preissued=False, slp=1, dual=False, lateB=None, R=8, cond=None, after_issue=None):
        L = a.newlabel("Lpoll_"+name); D = a.newlabel("Ldone_"+name); C2 = a.newlabel("Lchk_"+name)
        N1 = a.newlabel("Lnb_"+name); N2 = a.newlabel("Lnb_"+name)
        lim = poll_limit - (poll_limit % bper) + bper - 1
        a(f"s_mov_b32 s62, {lim}")
        if first_sleep: a(f"s_sleep {first_sleep}")
        if mask: a(mask)
        if preissued:
            a(f"s_branch {C2}")
        if after_issue:
            if dual:
                a("s_mov_b32 s56, s98")
                a("s_mov_b32 s57, s99")
            for ln in loads: a(ln)
            after_issue()
            a(f"s_branch {C2}")
        a.label(L)
        if lateB:
            a(f"s_cmp_lg_u32 s62, {lim-R}")
            a(f"s_cbranch_scc1 {N1}")
            if cond:
                a(f"s_cmp_eq_u32 {cond}, 0")
                a(f"s_cbranch_scc1 {N1}")
            a("s_mov_b64 s[60:61], exec")
            a("s_mov_b64 exec, -1")
            a(lateB)
            a("s_mov_b64 exec, s[60:61]")
            a.label(N1)
        if dual:
            a(f"s_and_b32 s63, s62, {bper-1}")
            a("s_cselect_b32 s56, s98, s40")
            a("s_cselect_b32 s57, s99, s41")
        for ln in loads: a(ln)
        a.label(C2)
        a("s_waitcnt vmcnt(0)")
        for i, t in enumerate(tags):
            if i == 0: a(f"v_cmp_ne_u32 vcc, s8, v{t}")
            else:
                a(f"v_cmp_ne_u32 s[60:61], s8, v{t}")
                a("s_or_b64 vcc, vcc, s[60:61]")
        a("s_mov_b64 exec, vcc")
        a(f"s_cbranch_execz {D}")
        a("s_sub_u32 s62, s62, 1")
        a(f"s_cbranch_scc1 {D}")
        if slp: a(f"s_sleep {slp}")
        a(f"s_branch {L}")
        a.label(D)
        a("s_mov_b64 exec, -1")
        if lateB:
            a(f"s_cmp_le_u32 s62, {lim-R}")
            a(f"s_cbranch_scc1 {N2}")
            if cond:
                a(f"s_cmp_eq_u32 {cond}, 0")
                a(f"s_cbranch_scc1 {N2}")
            a(lateB)
            a("s_mov_b64 exec, -1")
            a.label(N2)
    def signal(cnt, wait_lds=True):
        if wait_lds: a("s_waitcnt lgkmcnt(0)")
        a("s_mov_b64 exec, 1")
        a(f"ds_add_u32 v62, v63 offset:{cnt-S0}")
        a("s_mov_b64 exec, -1")
    def spin(cnt, target, name, slp=None):
        L = a.newlabel("Lspin_"+name); D = a.newlabel("Lsd_"+name)
        a(f"s_mov_b32 s62, {poll_limit*8}")
        a.label(L)
        a(f"ds_read_b32 v61, v62 offset:{cnt-S0}")
        a("s_waitcnt lgkmcnt(0)")
        a("v_readfirstlane_b32 s63, v61")
        a(f"s_cmp_ge_u32 s63, {target}")
        a(f"s_cbranch_scc1 {D}")
        a("s_sub_u32 s62, s62, 1")
        a(f"s_cbranch_scc1 {D}")
        sl = spin_sleep if slp is None else slp
        if sl: a(f"s_sleep {sl}")
        a(f"s_branch {L}")
        a.label(D)

    a(f"""
s_cmp_ge_u32 s2, 256
s_cbranch_scc1 L_end
""")
    stamp_at(0)
    a(f"""
s_load_dwordx16 s[16:31], s[0:1], 0
s_load_dwordx8 s[32:39], s[0:1], 64
s_load_dwordx2 s[40:41], s[0:1], 96
v_lshrrev_b32 v1, 6, v0
v_and_b32 v0, 63, v0
v_readfirstlane_b32 s3, v1
v_and_b32 v1, 15, v0
v_lshrrev_b32 v2, 4, v0
v_and_b32 v3, 3, v0
v_lshrrev_b32 v58, 2, v1
s_and_b32 s4, s2, 7
s_lshr_b32 s5, s2, 3
s_lshr_b32 s6, s5, 3
s_and_b32 s7, s5, 7
v_mov_b32 v62, {S0}
v_mov_b32 v63, 1
s_mov_b32 s51, 0x00020000
s_mov_b32 s55, 0x00020000
s_cmp_ge_u32 s3, 4
s_cbranch_scc1 L_GB
; ================= group A =================
s_add_u32 s10, s5, {jrot}
s_and_b32 s10, s10, 15
s_lshl_b32 s9, s4, 4
s_add_u32 s9, s9, s10
s_mul_i32 s10, s4, 14
s_add_u32 s10, s10, s5
s_add_u32 s10, s10, 112
s_cmp_ge_u32 s5, 16
s_cselect_b32 s9, s10, s9
s_movk_i32 s12, 8192
s_movk_i32 s13, 3584
s_mov_b32 s14, 4194304
s_mov_b32 s15, 1835008
s_cselect_b32 s12, s13, s12
s_cselect_b32 s14, s15, s14
s_cselect_b32 s10, 128, 0
s_cmp_ge_u32 s9, 184
s_cselect_b32 s10, 184, s10
s_sub_u32 s10, s9, s10
s_and_b32 s11, s10, 1
s_lshr_b32 s10, s10, 1
s_lshl_b32 s10, s10, 7
s_lshl_b32 s13, s12, 8
s_mul_i32 s13, s13, s11
s_add_u32 s10, s10, s13
s_sub_u32 s50, s14, s10
s_cmp_ge_u32 s5, 30
s_cselect_b32 s50, 0, s50
s_cselect_b32 s9, 255, s9
v_lshrrev_b32 v6, 3, v0
v_mul_lo_u32 v6, v6, s12
v_and_b32 v8, 7, v0
v_bfe_u32 v9, v0, 4, 1
v_lshlrev_b32 v9, 1, v9
v_xor_b32 v8, v8, v9
v_lshl_add_u32 v6, v8, 4, v6
v_xor_b32 v7, 64, v6
s_lshl_b32 s15, s12, 6
s_mul_i32 s15, s15, s3
s_lshl_b32 s13, s12, 3
s_lshl_b32 s14, s3, 13
s_add_u32 s14, s14, {LVB}
s_mov_b32 m0, s14
s_add_u32 s14, s14, 8192
v_lshlrev_b32 v8, 10, v3
v_lshl_add_u32 v8, v2, 4, v8
v_lshlrev_b32 v9, 4, v2
v_mov_b32 v4, 0
v_lshlrev_b32 v172, 4, v0
s_lshl_b32 s60, s11, 9
s_lshl_b32 s61, s3, 7
s_add_u32 s60, s60, s61
s_lshl_b32 s61, s3, 8
s_mov_b32 s46, {WS_END}
s_mov_b32 s47, 0x00020000
s_mov_b32 s54, 4096
s_mov_b32 s58, 1024
s_mov_b32 s59, 0x00020000
s_waitcnt lgkmcnt(0)
""")
    stamp_at(14)
    a(f"""
s_mov_b32 s44, s40
s_mov_b32 s45, s41
s_mov_b32 s52, s16
s_mov_b32 s53, s17
s_mov_b32 s56, s34
s_mov_b32 s57, s35
buffer_load_dword v5, v4, s[44:47], 0 offen sc1
""")
    exec_n4()
    for s in range(2):
        a(f"buffer_load_dwordx4 v[{64+4*s}:{67+4*s}], v8, s[52:55], s60 offen offset:{64*s}")
    for s in range(4):
        a(f"buffer_load_dwordx4 v[{72+4*s}:{75+4*s}], v8, s[52:55], s61 offen offset:{64*s}")
    a("s_mov_b32 exec_lo, 0x00010001\ns_mov_b32 exec_hi, 0x00010001")
    for s in range(4):
        a(f"buffer_load_dwordx4 v[{88+4*s}:{91+4*s}], v9, s[56:59], s61 offen offset:{64*s}")
    exec_all()
    a(f"""
s_cmp_ge_u32 s9, 128
s_cselect_b32 s48, s28, s22
s_cselect_b32 s49, s29, s23
s_cmp_ge_u32 s9, 184
s_cselect_b32 s48, s30, s48
s_cselect_b32 s49, s31, s49
s_add_u32 s48, s48, s10
s_addc_u32 s49, s49, 0
L_W1:
buffer_load_dwordx4 v6, s[48:51], s15 offen{NT} lds
s_add_u32 s15, s15, s13
s_add_u32 m0, m0, 1024
s_nop 0
buffer_load_dwordx4 v7, s[48:51], s15 offen{NT} lds
s_add_u32 s15, s15, s13
s_add_u32 m0, m0, 1024
s_cmp_lt_u32 m0, s14
s_cbranch_scc1 L_W1
s_barrier
""")
    stamp_at(1)
    a(f"""
v_lshl_add_u32 v9, v2, 3, v58
v_lshlrev_b32 v9, 7, v9
v_bfe_u32 v10, v1, 3, 1
v_and_b32 v11, 1, v2
v_lshl_add_u32 v10, v11, 1, v10
v_lshl_add_u32 v9, v10, 5, v9
v_lshl_add_u32 v9, v3, 3, v9
s_lshl_b32 s14, s3, 13
s_add_u32 s14, s14, {LVB}
v_add_u32 v10, s14, v9
v_xor_b32 v11, 32, v10
v_xor_b32 v12, 64, v10
v_xor_b32 v13, 96, v10
v_lshlrev_b32 v8, 6, v2
v_lshl_add_u32 v8, v1, 4, v8
s_mul_i32 s10, s3, 1280
s_add_u32 s10, s10, {PART}
v_add_u32 v8, s10, v8
s_add_u32 s98, s40, {AOFF}
s_addc_u32 s99, s41, 0
s_mov_b32 s52, s98
s_mov_b32 s53, s99
s_mov_b32 s54, {WS_END}
s_mov_b32 s58, {WS_END}
s_mov_b32 s101, 0
s_lshl_b32 s100, s9, 11
s_add_u32 s100, s100, {WS_P1}
s_waitcnt vmcnt(0)
""")
    stamp_at(2)
    for s in range(2):
        for ct in range(4):
            for hf in range(2):
                r = 104 + (s*4+ct)*4 + 2*hf
                a(f"ds_read_b64_tr_b16 v[{r}:{r+1}], v{10+ct} offset:{s*4096+hf*512}")
    for s in range(4):
        c = "0" if s == 0 else "v[32:35]"
        a(f"v_mfma_f32_16x16x32_bf16 v[32:35], v[{88+4*s}:{91+4*s}], v[{72+4*s}:{75+4*s}], {c}")
    a(f"v_readfirstlane_b32 s8, v5\ns_add_u32 s8, s8, 1\ns_mul_i32 s8, s8, {HASH:#x}")
    for s in range(2):
        for ct in range(4):
            c = "0" if s == 0 else f"v[{16+4*ct}:{19+4*ct}]"
            r = 104 + (s*4+ct)*4
            if ct == 0: a(f"s_waitcnt lgkmcnt({8 if s == 0 else 0})")
            a(f"v_mfma_f32_16x16x32_bf16 v[{16+4*ct}:{19+4*ct}], v[{r}:{r+3}], v[{64+4*s}:{67+4*s}], {c}")
    a("s_nop 5")
    exec_n4()
    for t in range(5):
        a(f"ds_write_b128 v8, v[{16+4*t}:{19+4*t}] offset:{256*t}")
    a(f"""
s_mov_b64 exec, 1
s_waitcnt lgkmcnt(0)
ds_add_rtn_u32 v11, v62, v63
s_mov_b64 exec, -1
v_bfe_u32 v8, v0, 3, 2
v_lshlrev_b32 v8, 8, v8
v_bfe_u32 v10, v0, 1, 2
v_lshl_add_u32 v8, v10, 6, v8
v_lshrrev_b32 v10, 5, v0
v_lshl_add_u32 v8, v10, 4, v8
v_and_b32 v10, 1, v0
v_lshl_add_u32 v8, v10, 3, v8
v_add_u32 v8, {PART}, v8
v_lshlrev_b32 v9, 4, v3
v_add_u32 v9, {PART+1024}, v9
v_mov_b32 v165, s8
v_mov_b32 v167, s8
v_mov_b32 v169, s8
v_mov_b32 v171, s8
s_waitcnt lgkmcnt(0)
v_readfirstlane_b32 s10, v11
s_cmp_lg_u32 s10, 3
s_cbranch_scc1 L_QP
""")
    for k in range(2):
        for w in range(4):
            r = 16 + (k*4+w)*2
            a(f"ds_read_b64 v[{r}:{r+1}], v8 offset:{1280*w+32*k}")
    for w in range(4):
        a(f"ds_read_b32 v{32+w}, v9 offset:{1280*w}")
    a(f"""
s_waitcnt lgkmcnt(4)
v_add_f32 v16, v16, v18
v_add_f32 v17, v17, v19
v_add_f32 v20, v20, v22
v_add_f32 v21, v21, v23
v_add_f32 v24, v24, v26
v_add_f32 v25, v25, v27
v_add_f32 v28, v28, v30
v_add_f32 v29, v29, v31
v_add_f32 v164, v16, v20
v_add_f32 v166, v17, v21
v_add_f32 v168, v24, v28
v_add_f32 v170, v25, v29
s_cmp_ge_u32 s9, 128
s_cbranch_scc1 L_NOA1
s_mov_b32 s101, 1
buffer_store_dwordx4 v[164:167], v172, s[52:55], s100 offen
buffer_store_dwordx4 v[168:171], v172, s[52:55], s100 offen offset:1024
s_branch L_NOA2
L_NOA1:
buffer_store_dwordx4 v[164:167], v172, s[44:47], s100 offen sc1
buffer_store_dwordx4 v[168:171], v172, s[44:47], s100 offen offset:1024 sc1
L_NOA2:
s_waitcnt lgkmcnt(0)
v_add_f32 v32, v32, v33
v_add_f32 v34, v34, v35
v_add_f32 v32, v32, v34
v_mul_f32 v32, {f32hex(-LOG2E)}, v32
v_exp_f32 v32, v32
v_lshlrev_b32 v9, 2, v0
v_add_f32 v32, 1.0, v32
v_rcp_f32 v32, v32
v_add_u32 v9, {GG}, v9
s_mov_b64 exec, 15
ds_write_b32 v9, v32
s_mov_b64 exec, -1
L_QP:
""")
    stamp_at(3)
    a(f"""
v_lshrrev_b32 v9, 5, v0
v_lshlrev_b32 v9, 12, v9
v_and_b32 v10, 31, v0
v_lshl_add_u32 v9, v10, 4, v9
s_lshl_b32 s10, s4, 4
s_lshl_b32 s11, s3, 2
s_add_u32 s10, s10, s11
s_lshl_b32 s10, s10, 11
s_lshl_b32 s11, s6, 9
s_add_u32 s10, s10, s11
s_add_u32 s10, s10, {WS_P1}
""")
    poll(["buffer_load_dwordx4 v[24:27], v9, s[56:59], s10 offen sc1",
          "buffer_load_dwordx4 v[28:31], v9, s[56:59], s10 offen offset:2048 sc1"], [25, 27, 29, 31], "q",
         first_sleep=qsleep, slp=qslp, dual=True, cond="s101", R=3,
         lateB="buffer_store_dwordx4 v[164:167], v172, s[44:47], s100 offen sc1\nbuffer_store_dwordx4 v[168:171], v172, s[44:47], s100 offen offset:1024 sc1")
    a(f"""
s_lshl_b32 s10, s3, 8
s_add_u32 s10, s10, {QQ}
v_add_f32 v24, v24, v28
v_add_f32 v26, v26, v30
v_lshlrev_b32 v9, 2, v0
v_add_u32 v9, s10, v9
v_cvt_pk_bf16_f32 v24, v24, v26
ds_write_b32 v9, v24
""")
    signal(C_QK)
    stamp_at(4)
    a(f"""
v_xor_b32 v8, v2, v1
s_lshl_b32 s10, s3, 14
v_lshl_add_u32 v9, v1, 8, s10
v_lshl_add_u32 v10, v8, 4, v9
v_xor_b32 v11, 64, v10
v_xor_b32 v12, 128, v10
v_xor_b32 v13, 192, v10
v_lshlrev_b32 v14, 8, v58
v_lshl_add_u32 v14, v2, 4, v14
v_add_u32 v14, {QQ}, v14
s_mov_b32 s12, {f32hex(SCALE_LOG2E)}
v_lshlrev_b32 v36, 6, v2
v_lshl_add_u32 v36, v58, 4, v36
s_lshl_b32 s11, s3, 9
s_add_u32 s11, s11, {PP}
v_add_u32 v37, s11, v36
v_lshlrev_b32 v38, 5, v58
s_lshl_b32 s11, s3, 2
s_add_u32 s11, s11, {ML}
v_add_u32 v39, s11, v38
s_lshl_b32 s13, s4, 2
s_add_u32 s13, s13, s6
s_lshl_b32 s14, s13, 1
s_bfe_u32 s15, s5, 0x10002
s_add_u32 s14, s14, s15
v_min_u32 v8, 13, v1
s_mul_i32 s10, s14, 28
v_lshl_add_u32 v9, v8, 1, s10
v_lshrrev_b32 v59, 6, v9
v_lshlrev_b32 v59, 12, v59
v_and_b32 v8, 63, v9
v_lshl_add_u32 v59, v8, 3, v59
s_lshl_b32 s10, s3, 9
s_add_u32 s96, s10, {WS_P1+128*2048}
s_add_u32 s97, s10, {WS_P1+184*2048}
""")
    spin(C_QK, 8, "qk")
    stamp_at(5)
    for j in range(4):
        a(f"ds_read_b128 v[{64+4*j}:{67+4*j}], v14 offset:{64*j}")
    for tt in range(4):
        for j in range(4):
            r = 80+(tt*4+j)*4
            a(f"ds_read_b128 v[{r}:{r+3}], v{10+j} offset:{tt*4096}")
    for tt in range(4):
        a(f"s_waitcnt lgkmcnt({12-4*tt})")
        for j in range(4):
            r = 80+(tt*4+j)*4
            c = "0" if j == 0 else f"v[{16+4*tt}:{19+4*tt}]"
            a(f"v_mfma_f32_16x16x32_bf16 v[{16+4*tt}:{19+4*tt}], v[{r}:{r+3}], v[{64+4*j}:{67+4*j}], {c}")
    HL = ["buffer_load_dwordx4 v[144:147], v59, s[44:47], s96 offen sc1",
          "buffer_load_dwordx4 v[148:151], v59, s[44:47], s96 offen offset:2048 sc1",
          "buffer_load_dwordx4 v[152:155], v59, s[44:47], s97 offen sc1",
          "buffer_load_dwordx4 v[156:159], v59, s[44:47], s97 offen offset:2048 sc1"]
    a("s_mov_b64 exec, 0xffff")
    for ln in HL: a(ln)
    exec_all()
    a(f"""
v_max3_f32 v32, v16, v17, v18
v_max3_f32 v33, v19, v20, v21
v_max3_f32 v32, v32, v22, v23
v_max3_f32 v33, v33, v24, v25
v_max3_f32 v32, v32, v26, v27
v_max3_f32 v33, v33, v28, v29
v_max3_f32 v32, v32, v30, v31
v_max_f32 v32, v32, v33
v_mov_b32 v33, v32
s_nop 1
v_permlane32_swap_b32 v32, v33
v_max_f32 v32, v32, v33
v_mov_b32 v33, v32
s_nop 1
v_permlane16_swap_b32 v32, v33
v_max_f32 v32, v32, v33
v_mul_f32 v32, s12, v32
""")
    for i in range(16):
        a(f"v_fma_f32 v{16+i}, v{16+i}, s12, -v32")
    for i in range(16):
        a(f"v_exp_f32 v{16+i}, v{16+i}")
    for i in range(8):
        a(f"v_cvt_pk_bf16_f32 v{40+i}, v{16+2*i}, v{17+2*i}")
    for i in range(8):
        a(f"v_add_f32 v{16+2*i}, v{16+2*i}, v{17+2*i}")
    a(f"""
v_add_f32 v16, v16, v18
v_add_f32 v20, v20, v22
v_add_f32 v24, v24, v26
v_add_f32 v28, v28, v30
v_add_f32 v16, v16, v20
v_add_f32 v24, v24, v28
v_add_f32 v33, v16, v24
v_mov_b32 v34, v33
s_mov_b32 exec_lo, 0x11111111
s_mov_b32 exec_hi, 0x11111111
ds_write_b128 v37, v[40:43]
ds_write_b128 v37, v[44:47] offset:256
s_mov_b64 exec, -1
v_permlane32_swap_b32 v33, v34
v_add_f32 v33, v33, v34
v_mov_b32 v34, v33
s_nop 1
v_permlane16_swap_b32 v33, v34
v_add_f32 v33, v33, v34
s_mov_b64 exec, 0x1111
ds_write_b32 v39, v32
ds_write_b32 v39, v33 offset:16
s_mov_b64 exec, -1
""")
    signal(C_P)
    stamp_at(6)
    a(f"""
v_add_u32 v36, {PP}, v36
v_lshlrev_b32 v38, 5, v2
v_add_u32 v38, {ML}, v38
v_lshl_add_u32 v9, v2, 2, v58
v_and_b32 v10, 7, v9
v_lshlrev_b32 v10, 1, v10
v_lshrrev_b32 v11, 1, v3
s_lshl_b32 s10, s3, 2
v_add_u32 v11, s10, v11
v_xor_b32 v10, v10, v11
v_lshlrev_b32 v10, 4, v10
v_lshl_add_u32 v10, v9, 8, v10
v_and_b32 v11, 1, v3
v_lshl_add_u32 v10, v11, 3, v10
v_add_u32 v12, {LV}, v10
v_xor_b32 v13, 32, v12
v_add_u32 v6, {W3}, v10
v_xor_b32 v7, 32, v6
s_lshl_b32 s10, s4, 4
s_add_u32 s10, s10, s6
s_lshl_b32 s10, s10, 3
s_add_u32 s10, s10, s7
v_lshlrev_b32 v160, 14, v2
v_and_b32 v15, 1, v1
v_lshl_add_u32 v160, v15, 6, v160
v_lshrrev_b32 v15, 1, v1
v_lshl_add_u32 v160, v15, 3, v160
s_lshl_b32 s94, s10, 9
s_lshl_b32 s12, s3, 7
s_add_u32 s94, s94, s12
s_add_u32 s94, s94, {WS_P2}
v_lshlrev_b32 v161, 11, v2
v_lshl_add_u32 v161, v1, 3, v161
s_lshl_b32 s95, s10, 6
s_add_u32 s95, s95, {WS_P2L}
s_lshl_b32 s12, s3, 4
s_mov_b64 s[86:87], 0xff
s_lshl_b64 s[86:87], s[86:87], s12
s_mov_b32 s42, 0xAAAAAAAA
s_mov_b32 s43, 0xAAAAAAAA
s_lshl_b32 s10, s13, 2
s_add_u32 s10, s10, s3
s_lshl_b32 s11, s10, 12
s_lshl_b32 s12, s15, 8
s_add_u32 s11, s11, s12
s_add_u32 s11, s11, {WS_P2}
s_lshl_b32 s12, s10, 9
s_add_u32 s12, s12, {WS_P2L+56}
v_lshlrev_b32 v173, 4, v1
v_lshl_add_u32 v173, v2, 10, v173
v_lshlrev_b32 v174, 7, v2
v_lshrrev_b32 v175, 3, v1
v_lshlrev_b32 v175, 8, v175
v_lshl_add_u32 v175, v3, 4, v175
v_bfe_u32 v15, v1, 2, 1
v_lshl_add_u32 v175, v15, 3, v175
s_lshl_b32 s10, s3, 6
s_add_u32 s10, s10, {XO}
v_add_u32 v175, s10, v175
""")
    spin(C_P, 4, "p")
    for s in range(8):
        a(f"ds_read_b128 v[{64+4*s}:{67+4*s}], v36 offset:{256*s}")
    a(f"""
ds_read_b128 v[48:51], v38
ds_read_b128 v[52:55], v38 offset:16
s_waitcnt lgkmcnt(0)
v_max3_f32 v56, v48, v49, v50
v_max_f32 v56, v56, v51
v_sub_f32 v48, v48, v56
v_sub_f32 v49, v49, v56
v_sub_f32 v50, v50, v56
v_sub_f32 v51, v51, v56
v_exp_f32 v48, v48
v_exp_f32 v49, v49
v_exp_f32 v50, v50
v_exp_f32 v51, v51
s_nop 0
v_mul_f32 v57, v48, v52
v_fmac_f32 v57, v49, v53
v_fmac_f32 v57, v50, v54
v_fmac_f32 v57, v51, v55
v_rcp_f32 v55, v57
v_log_f32 v162, v57
v_mov_b32 v163, s8
v_mov_b32 v133, s8
v_mul_f32 v48, v48, v55
v_mul_f32 v49, v49, v55
v_mul_f32 v50, v50, v55
v_mul_f32 v51, v51, v55
v_add_f32 v162, v162, v56
""")
    def pv_stage(st):
        for u in range(2):
            for sl in range(4):
                s = st*4 + sl
                for hf in range(2):
                    r = 96 + (u*4+sl)*4 + 2*hf
                    a(f"ds_read_b64_tr_b16 v[{r}:{r+1}], v{12+u} offset:{s*8192+hf*4096}")
        n = 16
        for u in range(2):
            for sl in range(4):
                s = st*4 + sl
                tq = s >> 1
                r = 96 + (u*4+sl)*4
                acc = 16 + (u*4+tq)*4
                n -= 2
                a(f"s_waitcnt lgkmcnt({n})")
                c = "0" if (s & 1) == 0 else f"v[{acc}:{acc+3}]"
                a(f"v_mfma_f32_16x16x32_bf16 v[{acc}:{acc+3}], v[{64+4*s}:{67+4*s}], v[{r}:{r+3}], {c}")
    spin(C_VA, 4, "va")
    pv_stage(0)
    a("s_nop 7")
    for u in range(2):
        a(f"v_mul_f32 v{128+u}, v48, v{16+(u*4+0)*4}")
    for u in range(2):
        a(f"v_fmac_f32 v{128+u}, v49, v{16+(u*4+1)*4}")
    poll(HL, [145+2*i for i in range(8)], "h", mask="s_mov_b64 exec, 0xffff", preissued=True, slp=hslp)
    a(f"""
v_add_f32 v16, v144, v148
v_add_f32 v17, v146, v150
v_add_f32 v18, v152, v156
v_add_f32 v19, v154, v158
v_mul_f32 v20, {f32hex(-LOG2E)}, v16
v_mul_f32 v21, {f32hex(-LOG2E)}, v17
v_exp_f32 v20, v20
v_exp_f32 v21, v21
v_mul_f32 v16, v16, v18
v_add_f32 v20, 1.0, v20
v_add_f32 v21, 1.0, v21
v_rcp_f32 v20, v20
v_rcp_f32 v21, v21
v_mul_f32 v17, v17, v19
v_mul_f32 v16, v16, v20
v_mul_f32 v17, v17, v21
v_cvt_pk_bf16_f32 v16, v16, v17
v_cmp_gt_u32 vcc, 14, v1
v_bfe_u32 v23, v1, 1, 2
v_lshlrev_b32 v22, 4, v23
v_lshrrev_b32 v23, 3, v1
v_lshl_add_u32 v22, v23, 3, v22
v_and_b32 v23, 1, v1
v_lshl_add_u32 v22, v23, 2, v22
s_lshl_b32 s10, s3, 6
s_add_u32 s10, s10, {XH}
v_add_u32 v22, s10, v22
v_cndmask_b32 v16, 0, v16, vcc
s_mov_b64 exec, 0xffff
ds_write_b32 v22, v16
s_mov_b64 exec, -1
v_lshlrev_b32 v8, 6, v58
v_lshl_add_u32 v8, v2, 4, v8
v_add_u32 v9, {XO}, v8
v_lshlrev_b32 v10, 2, v2
v_add_u32 v10, {GG}, v10
{P3ADDR}
""")
    spin(C_VB, 4, "vb", slp=vbslp)
    stamp_at(7)
    pv_stage(1)
    a(f"""
s_nop 6
v_fmac_f32 v128, v50, v24
v_fmac_f32 v129, v50, v40
v_fmac_f32 v128, v51, v28
v_fmac_f32 v129, v51, v44
s_nop 0
v_mov_b32_dpp v130, v128 quad_perm:[1,0,3,2] row_mask:0xf bank_mask:0xf
v_mov_b32_dpp v131, v129 quad_perm:[1,0,3,2] row_mask:0xf bank_mask:0xf
v_cvt_pk_bf16_f32 v130, v128, v130
v_cvt_pk_bf16_f32 v131, v131, v129
v_cndmask_b32 v132, v130, v131, s[42:43]
buffer_store_dwordx2 v[132:133], v160, s[52:55], s94 offen
s_mov_b64 exec, s[86:87]
buffer_store_dwordx2 v[162:163], v161, s[52:55], s95 offen
s_mov_b64 exec, -1
""")
    if w3late == 1: signal(C_S, wait_lds=False)
    stamp_at(8)
    loads = [f"buffer_load_dwordx4 v[{64+4*i}:{67+4*i}], v173, s[56:59], s11 offen offset:{512*i} sc1" for i in range(2)]
    loads += ["buffer_load_dwordx4 v[72:75], v174, s[56:59], s12 offen sc1"]
    poll(loads, [65+2*i for i in range(6)], "o", first_sleep=osleep, slp=oslp, dual=True, R=10, after_issue=((lambda: signal(C_S, wait_lds=False)) if w3late == 2 else None),
         lateB="buffer_store_dwordx2 v[132:133], v160, s[44:47], s94 offen sc1\ns_mov_b64 exec, s[86:87]\nbuffer_store_dwordx2 v[162:163], v161, s[44:47], s95 offen sc1")
    stamp_at(9)
    a(f"""
v_max_f32 v16, v72, v74
v_lshlrev_b32 v40, 16, v64
v_mov_b32 v17, v16
v_and_b32 v41, 0xffff0000, v64
v_lshlrev_b32 v42, 16, v66
v_permlane32_swap_b32 v16, v17
v_and_b32 v43, 0xffff0000, v66
v_max_f32 v16, v16, v17
v_lshlrev_b32 v44, 16, v68
v_mov_b32 v17, v16
v_and_b32 v45, 0xffff0000, v68
v_lshlrev_b32 v46, 16, v70
v_permlane16_swap_b32 v16, v17
v_and_b32 v47, 0xffff0000, v70
v_max_f32 v16, v16, v17
v_sub_f32 v72, v72, v16
v_sub_f32 v74, v74, v16
v_exp_f32 v72, v72
v_exp_f32 v74, v74
v_mov_b32 v29, s8
v_mul_f32 v18, v72, v40
v_mul_f32 v19, v72, v41
v_mul_f32 v20, v72, v42
v_mul_f32 v21, v72, v43
v_add_f32 v16, v72, v74
v_fmac_f32 v18, v74, v44
v_fmac_f32 v19, v74, v45
v_fmac_f32 v20, v74, v46
v_fmac_f32 v21, v74, v47
v_mov_b32 v17, v16
v_mov_b32 v24, v18
v_mov_b32 v25, v19
v_mov_b32 v26, v20
v_mov_b32 v27, v21
v_permlane32_swap_b32 v16, v17
v_permlane32_swap_b32 v18, v24
v_permlane32_swap_b32 v19, v25
v_permlane32_swap_b32 v20, v26
v_permlane32_swap_b32 v21, v27
v_add_f32 v16, v16, v17
v_add_f32 v18, v18, v24
v_add_f32 v19, v19, v25
v_add_f32 v20, v20, v26
v_add_f32 v21, v21, v27
v_mov_b32 v17, v16
v_mov_b32 v24, v18
v_mov_b32 v25, v19
v_mov_b32 v26, v20
v_mov_b32 v27, v21
v_permlane16_swap_b32 v16, v17
v_permlane16_swap_b32 v18, v24
v_permlane16_swap_b32 v19, v25
v_permlane16_swap_b32 v20, v26
v_permlane16_swap_b32 v21, v27
v_add_f32 v16, v16, v17
v_add_f32 v18, v18, v24
v_rcp_f32 v16, v16
v_add_f32 v19, v19, v25
v_add_f32 v20, v20, v26
v_add_f32 v21, v21, v27
v_mul_f32 v18, v18, v16
v_mul_f32 v19, v19, v16
v_mul_f32 v20, v20, v16
v_mul_f32 v21, v21, v16
v_cvt_pk_bf16_f32 v18, v18, v19
v_cvt_pk_bf16_f32 v19, v20, v21
ds_write_b64 v175, v[18:19]
v_mov_b32 v31, s8
s_waitcnt lgkmcnt(0)
s_barrier
""")
    stamp_at(10)
    a(f"""
ds_read_b128 v[64:67], v9
ds_read_b128 v[68:71], v9 offset:256
ds_read_b128 v[72:75], v9 offset:{XH-XO}
ds_read_b32 v11, v10
""")
    for u in range(2):
        for s in range(3):
            for hf in range(2):
                r = 96 + (u*3+s)*4 + 2*hf
                a(f"ds_read_b64_tr_b16 v[{r}:{r+1}], v{6+u} offset:{s*8192+hf*4096}")
    a("s_waitcnt lgkmcnt(6)")
    for u in range(2):
        b0 = 16 + 24*u
        r = 96 + u*12
        if u == 1: a("s_waitcnt lgkmcnt(0)")
        a(f"v_mfma_f32_16x16x32_bf16 v[{b0+4}:{b0+7}], v[72:75], v[{r+8}:{r+11}], 0")
        a(f"v_mfma_f32_16x16x32_bf16 v[{b0}:{b0+3}], v[64:67], v[{r}:{r+3}], 0")
        a(f"v_mfma_f32_16x16x32_bf16 v[{b0}:{b0+3}], v[68:71], v[{r+4}:{r+7}], v[{b0}:{b0+3}]")
    a(f"""
v_sub_f32 v12, 1.0, v11
s_nop 3
v_mul_f32 v20, v20, v12
v_fma_f32 v28, v16, v11, v20
buffer_store_dwordx2 v[28:29], v14, s[44:47], s92 offen sc1
v_mul_f32 v44, v44, v12
s_nop 0
v_fma_f32 v30, v40, v11, v44
buffer_store_dwordx2 v[30:31], v14, s[44:47], s93 offen sc1
""")
    stamp_at(11)
    if p3full:
        YADDR = f"""s_lshr_b32 s10, s2, 1
s_lshl_b32 s10, s10, 13
s_and_b32 s11, s2, 1
s_lshl_b32 s11, s11, 6
s_add_u32 s10, s10, s11
s_add_u32 s10, s10, {WS_P3}
v_lshrrev_b32 v8, 2, v0
v_lshlrev_b32 v8, 7, v8
v_lshl_add_u32 v8, v3, 4, v8"""
        ystep = 2048
    else:
        YADDR = f"""s_lshl_b32 s10, s2, 12
s_add_u32 s10, s10, {WS_P3}
v_lshlrev_b32 v8, 4, v0"""
        ystep = 1024
    a(f"""
s_cmp_lg_u32 s3, 0
s_cbranch_scc1 L_FIN
{YADDR}
s_mov_b32 s48, s36
s_mov_b32 s49, s37
s_mov_b32 s50, 4096
""")
    if p3full:
        a("s_add_u32 s11, s10, 4096")
        loads = [f"buffer_load_dwordx4 v[{64+4*i}:{67+4*i}], v8, s[44:47], {'s10' if i < 2 else 's11'} offen offset:{2048*(i&1)} sc1" for i in range(4)]
    else:
        loads = [f"buffer_load_dwordx4 v[{64+4*i}:{67+4*i}], v8, s[44:47], s10 offen offset:{1024*i} sc1" for i in range(4)]
    poll(loads, [65+2*i for i in range(8)], "y", slp=yslp, first_sleep=ysleep)
    stamp_at(12)
    a(f"""
v_add_f32 v16, v64, v68
v_add_f32 v17, v66, v70
v_add_f32 v18, v72, v76
v_add_f32 v19, v74, v78
v_add_f32 v16, v16, v18
v_add_f32 v17, v17, v19
v_lshlrev_b32 v8, 2, v0
s_lshl_b32 s10, s2, 4
v_add_f32_dpp v16, v16, v16 row_ror:4 row_mask:0xf bank_mask:0xf
v_add_f32_dpp v17, v17, v17 row_ror:4 row_mask:0xf bank_mask:0xf
s_nop 1
v_add_f32_dpp v16, v16, v16 row_ror:8 row_mask:0xf bank_mask:0xf
v_add_f32_dpp v17, v17, v17 row_ror:8 row_mask:0xf bank_mask:0xf
v_mov_b32 v18, v16
v_mov_b32 v19, v17
s_nop 1
v_permlane16_swap_b32 v16, v18
v_permlane16_swap_b32 v17, v19
v_add_f32 v16, v16, v18
v_add_f32 v17, v17, v19
v_mov_b32 v18, v16
v_mov_b32 v19, v17
s_nop 1
v_permlane32_swap_b32 v16, v18
v_permlane32_swap_b32 v17, v19
v_add_f32 v16, v16, v18
v_add_f32 v17, v17, v19
v_cvt_pk_bf16_f32 v16, v16, v17
s_mov_b64 exec, 15
buffer_store_dword v16, v8, s[48:51], s10 offen sc1
s_cmp_lg_u32 s2, 0
s_cbranch_scc1 L_FIN
s_mov_b64 exec, 1
v_add_u32 v5, 1, v5
buffer_store_dword v5, v4, s[44:47], 0 offen sc1
s_branch L_FIN
""")
    RK0 = ""; RK1 = ""; VWAIT = None
    if rank:
        RK0 = f"""s_cmp_lg_u32 s3, 4
s_cbranch_scc1 L_NORK
s_mov_b32 s56, s38
s_mov_b32 s57, s39
s_mov_b32 s58, 256
s_mov_b32 s59, 0x00020000
s_lshl_b32 s14, s5, 2
v_mov_b32 v21, s14
v_mov_b32 v20, 1
s_mov_b64 exec, 1
buffer_atomic_add v20, v21, s[56:59], 0 offen sc0 sc1
s_mov_b64 exec, -1
L_NORK:"""
        RK1 = f"""s_cmp_lg_u32 s3, 4
s_cbranch_scc1 L_NORK2
v_add_u32 v20, 1, v20
s_mov_b64 exec, 1
ds_write_b32 v62, v20 offset:{C_RK-S0}
s_mov_b64 exec, -1
L_NORK2:
s_waitcnt lgkmcnt(0)
ds_read_b32 v20, v62 offset:{C_RK-S0}
s_waitcnt lgkmcnt(0)
v_readfirstlane_b32 s17, v20
s_cmp_gt_u32 s17, {rank[2]}
s_cselect_b32 s17, 1, 0
s_cselect_b32 s15, {rank[1]-1}, {rank[0]-1}
s_add_u32 s18, s15, 8"""
    a.label("L_GB")
    a(f"""
s_sub_u32 s9, s3, 4
s_lshl_b32 s10, s6, 3
s_add_u32 s10, s10, s4
s_lshl_b32 s10, s10, 21
s_lshl_b32 s11, s7, 16
s_add_u32 s13, s10, s11
s_add_u32 s13, s13, {6144*256}
s_mov_b32 s50, 65536
s_mov_b32 s54, 65536
s_mul_i32 s10, s2, {rot}
s_add_u32 s10, s10, s9
s_and_b32 s10, s10, 63
s_and_b32 s11, s10, 3
s_lshl_b32 s11, s11, 2
v_add_u32 v6, s11, v2
v_xor_b32 v6, v6, v1
v_lshlrev_b32 v6, 4, v6
v_lshl_add_u32 v6, v2, 8, v6
s_and_b32 s11, s10, 1
s_lshl_b32 s11, s11, 2
v_add_u32 v7, s11, v2
v_lshlrev_b32 v7, 1, v7
v_xor_b32 v7, v7, v1
v_lshlrev_b32 v7, 4, v7
v_lshl_add_u32 v7, v2, 8, v7
v_mov_b32 v8, 0
v_mov_b32 v9, 0
v_mov_b32 v10, 0
v_mov_b32 v11, 0
ds_write_b128 v62, v[8:11]
ds_write_b128 v62, v[8:11] offset:16
v_mov_b32 v60, {C_QK}
s_mov_b32 s12, 16
s_and_b32 s42, s5, 30
s_cmp_eq_u32 s42, 6
s_cselect_b32 s42, {16-(preS if preS is not None else pre)}, {16-pre}
s_waitcnt lgkmcnt(0)
""")
    stamp_at(14)
    a(f"""
s_add_u32 s48, s18, s13
s_addc_u32 s49, s19, 0
s_add_u32 s52, s20, s13
s_addc_u32 s53, s21, 0
{RK0}
{"s_barrier" if pre == 0 else ""}
L_KL:
s_lshl_b32 s11, s10, 10
s_mov_b32 m0, s11
s_add_u32 s10, s10, 4
s_and_b32 s10, s10, 63
s_waitcnt vmcnt({dK-1})
buffer_load_dwordx4 v6, s[48:51], s11 offen{NT} lds
s_sub_u32 s12, s12, 1
{"" if pre == 0 else f"s_cmp_lg_u32 s12, s42" + chr(10) + "s_cbranch_scc1 L_KL2" + chr(10) + "s_barrier" + chr(10) + "L_KL2:"}
s_cmp_lg_u32 s12, 0
s_cbranch_scc1 L_KL
s_and_b32 s10, s10, 31
s_mov_b32 s13, 0
""")
    stamp_at(2)
    a(f"""
s_mov_b32 s12, 0
s_mov_b32 s15, {dV-1}
{RK1}
s_lshl_b32 s14, s4, 2
s_add_u32 s14, s14, s6
s_lshl_b32 s14, s14, 1
s_bfe_u32 s11, s5, 0x10002
s_add_u32 s14, s14, s11
s_and_b32 s11, s5, 3
s_lshl_b32 s11, s11, 8
s_lshl_b32 s16, s14, 16
s_add_u32 s16, s16, s11
s_add_u32 s48, s24, s16
s_addc_u32 s49, s25, 0
s_sub_u32 s50, 4194304, s16
s_mul_i32 s16, s14, {28*1024}
s_add_u32 s16, s16, s11
s_add_u32 s56, s32, s16
s_addc_u32 s57, s33, 0
s_sub_u32 s58, 1835008, s16
s_mov_b32 s59, 0x00020000
v_lshlrev_b32 v8, 1, v2
v_xor_b32 v8, v8, v1
v_lshlrev_b32 v8, 4, v8
v_lshl_add_u32 v8, v2, 10, v8
v_xor_b32 v9, 0x80, v8
L_VL:
s_cmp_lg_u32 s12, 8
s_cbranch_scc1 L_V1
""")
    spin(C_P1, 4, "p1")
    a(f"""
s_mov_b32 s13, 32768
L_V1:
s_lshl_b32 s11, s10, 10
s_add_u32 s11, s11, s13
s_add_u32 m0, s11, {LV}
s_add_u32 s10, s10, 4
s_and_b32 s10, s10, 31
{(f"s_waitcnt vmcnt({dV-1})" if not rank else f"s_cmp_lg_u32 s17, 0" + chr(10) + "s_cbranch_scc1 L_Va" + chr(10) + f"s_waitcnt vmcnt({rank[0]-1})" + chr(10) + "s_branch L_Vb" + chr(10) + "L_Va:" + chr(10) + f"s_waitcnt vmcnt({rank[1]-1})" + chr(10) + "L_Vb:")}
s_cmp_lg_u32 s12, s15
s_cbranch_scc1 L_V2
s_mov_b64 exec, 1
ds_add_u32 v60, v63
s_mov_b64 exec, -1
v_add_u32 v60, 4, v60
{f"s_mov_b32 s15, {dV+7}" + chr(10) + f"s_cmp_eq_u32 s12, {dV+7}" + chr(10) + "s_cselect_b32 s15, 99, s15" if not rank else "s_cmp_eq_u32 s12, s18" + chr(10) + "s_cselect_b32 s15, 99, s18"}
L_V2:
buffer_load_dwordx4 v7, s[52:55], s11 offen{NT} lds
s_add_u32 s12, s12, 1
s_cmp_lt_u32 s12, 16
s_cbranch_scc1 L_VL
""")
    stamp_at(3)
    a(f"""
s_lshl_b32 s10, s9, 14
s_lshl_b32 s11, s9, 12
s_add_u32 s11, s11, {W3}
""")
    k = 0
    dWw = dW if dW is not None else dV
    done = {"VA": (dV if not rank else max(rank[0], rank[1]))+7 <= 15, "VB": False}
    if not done["VA"]:
        a("s_waitcnt vmcnt(8)"); signal(C_VA, wait_lds=False); done["VA"] = True
    if w3late:
        a("s_waitcnt vmcnt(0)"); signal(C_VB, wait_lds=False); done["VB"] = True
        spin(C_S, 4, "w3go")
        dWw = 16
    def w3step(srd, vreg, soff_line, m0_line):
        nonlocal k
        a(m0_line); a(soff_line)
        a(f"s_waitcnt vmcnt({dWw-1})")
        if not done["VA"] and dWw-1 <= 8 + k: signal(C_VA, wait_lds=False); done["VA"] = True
        if not done["VB"] and dWw-1 <= k: signal(C_VB, wait_lds=False); done["VB"] = True
        a(f"buffer_load_dwordx4 v{vreg}, {srd}, s12 offen{NT} lds")
        k += 1
    for ii in range(4):
        w3step("s[48:51]", 8+(ii&1), f"s_add_u32 s12, s10, {ii*4096}", f"s_add_u32 m0, s11, {ii*1024}")
    a(f"""
s_lshl_b32 s10, s9, 13
s_lshl_b32 s11, s9, 11
s_add_u32 s11, s11, {W3+16384}
""")
    for ii in range(2):
        w3step("s[56:59]", 8+(ii&1), f"s_add_u32 s12, s10, {ii*4096}\ns_min_u32 s12, s12, {6*4096}", f"s_add_u32 m0, s11, {ii*1024}")
    if not done["VA"]:
        a("s_waitcnt vmcnt(14)"); signal(C_VA, wait_lds=False)
    if not done["VB"]:
        a("s_waitcnt vmcnt(6)"); signal(C_VB, wait_lds=False)
    stamp_at(4)
    a("s_waitcnt vmcnt(0)")
    stamp_at(10)
    a.label("L_FIN")
    if stamps:
        a("s_mov_b64 exec, -1")
        stamp_at(13)
        a(f"""
s_waitcnt lgkmcnt(0) vmcnt(0)
s_mov_b32 s44, s40
s_mov_b32 s45, s41
s_mov_b32 s46, {WS_STAMP+256*8*64}
s_mov_b32 s47, 0x00020000
s_lshl_b32 s10, s2, 3
s_add_u32 s10, s10, s3
s_lshl_b32 s10, s10, 6
s_add_u32 s10, s10, {WS_STAMP}
v_mov_b32 v4, 0
s_mov_b64 exec, 1
""")
        for i in range(14):
            a(f"v_mov_b32 v6, s{64+2*i}")
            a(f"buffer_store_dword v6, v4, s[44:47], s10 offen offset:{4*i} sc1")
    a("L_end:")
    a("s_endpgm")
    return a.text()

HEADER = open("gated_mix__sliding_block_cached__glu_gated_swiglu__decode.s.ref").read().split("; Override launch geometry")[0]

DOC = """; ---------------------------------------------------------------------------------------------
;  waves 0-3 : phase 1  x@{wq|w1|w3} slice (64 cols x 256 rows, MFMA) + gate logit -> published as tagged granules
;  Cross-workgroup hand-offs use 8-byte {data, tag} granules in d_ws; tag = hash(epoch+1), epoch word = d_ws[0]
; ---------------------------------------------------------------------------------------------
"""
def full(**kw):
    return wrap(gen(**kw), 256, 512, 163840, vgpr=176, sgpr=102, header=HEADER + DOC)

if __name__ == "__main__":
    open("k11.s", "w").write(full())
    open("k11_diag.s", "w").write(full(stamps=True))
    V = {"b": {}, "q12": dict(qsleep=12), "q20": dict(qsleep=20), "q12s6": dict(qsleep=12, qslp=6), "q28": dict(qsleep=28), "b2": {}, "q12b": dict(qsleep=12)}
    for nm, kw in V.items():
        open(f"k11_diag_{nm}.s", "w").write(full(stamps=True, **kw))
```
